```python
import torch

def _softmax(x, axis=-1):
    return torch.softmax(x, dim=axis)
def _gelu(x):
    return torch.nn.functional.gelu(x, approximate="tanh")
def _silu(x):
    return torch.nn.functional.silu(x)
def _sigmoid(x):
    return torch.sigmoid(x)
def _layernorm(x, axis=-1, eps=1e-5):
    m = x.mean(dim=axis, keepdim=True)
    v = x.var(dim=axis, keepdim=True, unbiased=False)
    return (x - m) / torch.sqrt(v + eps)
def _scatter_add(tgt, idx, src, axis=0):
    return tgt.clone().index_add_(axis, idx, src)
def _segment_sum(src, seg, n):
    out = torch.zeros((n,) + src.shape[1:], dtype=src.dtype)
    return out.index_add_(0, seg, src)
def _pad(x, pw):
    flat = tuple(v for pair in reversed(pw) for v in pair)
    return torch.nn.functional.pad(x, flat)

kernel_name = 'gated_mix__sliding_block_cached__geglu_ffn__decode'

def setup_inputs():

    _w = (lambda a: (lambda t: t.to(torch.bfloat16) if t.is_floating_point() else t)(torch.as_tensor(a)))
    def _A_setup():
        B, Sq, D = 2, 1, 640
        Hq, Hkv, Sk, Dh = 32, 32, 8192, 128
        assert Hq % Hkv == 0, (Hq, Hkv)
        return {
            "x": _w((lambda *s: torch.randn(*s, dtype=torch.bfloat16) * 0.05)(B, Sq, D)),
            "k_cache": _w((lambda *s: torch.randn(*s, dtype=torch.bfloat16) * 6.4)(B, Hkv, Sk, Dh)),
            "v_cache": _w((lambda *s: torch.randn(*s, dtype=torch.bfloat16) * 0.2)(B, Hkv, Sk, Dh)),
            "wq": _w((lambda *s: torch.randn(*s, dtype=torch.bfloat16) * 6.4)(D, Hq * Dh) * (D ** -0.5)),
            "wo": _w((lambda *s: torch.randn(*s, dtype=torch.bfloat16) * 0.2)(Hq * Dh, D) * ((Hq * Dh) ** -0.5)),
        }
    _A_in = _A_setup()

    def _B_setup():
        B, S, D, F = 2, 1, 640, 1728
        return {
            "x": _w((lambda *s: torch.randn(*s, dtype=torch.bfloat16) * 0.05)(B, S, D)),
            "w_gate": _w((lambda *s: torch.randn(*s, dtype=torch.bfloat16) * 0.05)(D, F)),
            "w_up": _w((lambda *s: torch.randn(*s, dtype=torch.bfloat16) * 0.05)(D, F)),
            "w_down": _w((lambda *s: torch.randn(*s, dtype=torch.bfloat16) * 0.05)(F, D)),
        }
    _B_in = _B_setup()

    return {
        "A_x": _A_in["x"],
        "A_k_cache": _A_in["k_cache"],
        "A_v_cache": _A_in["v_cache"],
        "A_wq": _A_in["wq"],
        "A_wo": _A_in["wo"],
        "B_x": _B_in["x"],
        "B_w_gate": _B_in["w_gate"],
        "B_w_up": _B_in["w_up"],
        "B_w_down": _B_in["w_down"],
        "gate_w": _w((lambda *s: torch.randn(*s, dtype=torch.bfloat16) * 0.05)(640) * 16.0),
    }

def reference(A_x, A_k_cache, A_v_cache, A_wq, A_wo, B_x, B_w_gate, B_w_up, B_w_down, gate_w):
    def _A_ref(x, k_cache, v_cache, wq, wo):
        B, Sq, D = x.shape
        Hq, Dh = 32, 128
        Hkv, Sk = k_cache.shape[1], k_cache.shape[2]
        W = min(4096, max(256, Sk // 4))
        rep = Hq // Hkv
        q = (lambda x, *d: x.permute(*d))((x @ wq).reshape(B, Sq, Hq, Dh), 0, 2, 1, 3)
        k = (lambda x, n, axis: torch.repeat_interleave(x, n, dim=axis))(k_cache[:, :, Sk - W:, :], rep, axis=1)
        v = (lambda x, n, axis: torch.repeat_interleave(x, n, dim=axis))(v_cache[:, :, Sk - W:, :], rep, axis=1)
        scores = torch.einsum("bhqd,bhkd->bhqk", q, k) * (Dh ** -0.5)
        p = _softmax(scores, axis=-1)
        o = torch.einsum("bhqk,bhkd->bhqd", p, v)
        return (lambda x, *d: x.permute(*d))(o, 0, 2, 1, 3).reshape(B, Sq, Hq * Dh) @ wo

    def _B_ref(x, w_gate, w_up, w_down):
        return (_gelu(x @ w_gate) * (x @ w_up)) @ w_down

    x = A_x
    g = _sigmoid((x * gate_w).sum(-1, keepdims=True))
    a = _A_ref(x, A_k_cache, A_v_cache, A_wq, A_wo)
    b = _B_ref(x, B_w_gate, B_w_up, B_w_down)
    return g * a + (1 - g) * b
```

```python
import re
TRANS = ("v_exp_f32","v_log_f32","v_rcp_f32","v_rsq_f32","v_sqrt_f32","v_sin_f32","v_cos_f32")
def regs_of(tok):
    tok = tok.strip()
    tok = tok.lstrip('-')
    m = re.fullmatch(r"abs\((.*)\)", tok)
    if m: tok = m.group(1)
    tok = tok.strip('|')
    m = re.fullmatch(r"([vas])(\d+)", tok)
    if m: return {(m.group(1), int(m.group(2)))}
    m = re.fullmatch(r"([vas])\[(\d+):(\d+)\]", tok)
    if m: return {(m.group(1), i) for i in range(int(m.group(2)), int(m.group(3))+1)}
    if tok == "vcc": return {("s", 106), ("s", 107)}
    if tok == "vcc_lo": return {("s",106)}
    if tok == "vcc_hi": return {("s",107)}
    if tok == "exec": return {("s", 126), ("s", 127)}
    if tok == "m0": return {("s", 124)}
    return set()
class I:
    def __init__(s, text):
        s.text = text
        t = text.split(";")[0].strip()
        s.label = None; s.op = None
        s.dst = set(); s.src = set(); s.kind = "other"
        s.srcC = set(); s.srcAB = set(); s.dpp = False; s.trans = False; s.stdata = set(); s.target=None; s.ws = 1
        if not t or t.startswith("."):
            s.kind = "none"; s.ws = 0; return
        if t.endswith(":"):
            s.label = t[:-1]; s.kind = "none"; s.ws = 0; return
        p = t.split(None, 1)
        s.op = op = p[0]
        rest = p[1] if len(p) > 1 else ""
        ops = []; cur = ""; depth = 0
        for ch in rest:
            if ch in "[(": depth += 1
            if ch in "])": depth -= 1
            if ch == "," and depth == 0: ops.append(cur.strip()); cur = ""
            else: cur += ch
        if cur.strip(): ops.append(cur.strip())
        mods = ""
        if ops:
            lp = ops[-1].split(None, 1)
            ops[-1] = lp[0]; mods = lp[1] if len(lp) > 1 else ""
        s.ops = ops; s.mods = mods
        R = [regs_of(o) for o in ops]
        if op == "s_nop": s.ws = int(ops[0], 0) + 1; s.kind = "salu"; return
        if op.startswith("s_cbranch") or op == "s_branch":
            s.target = ops[0]; s.kind = "branch"; return
        if op == "s_endpgm": s.kind = "end"; return
        if op.startswith("v_mfma"):
            s.kind = "mfma"; s.dst = R[0]; s.srcAB = R[1] | R[2]; s.srcC = R[3]; s.src = s.srcAB | s.srcC
            s.passes = 4 if "16x16x32" in op else 8
            return
        if op.startswith("v_"):
            s.kind = "valu"
            base = re.sub(r"_(e32|e64|dpp|sdwa)$", "", op)
            s.base = base
            s.trans = base in TRANS
            s.dpp = op.endswith("_dpp")
            if base.startswith("v_permlane"):
                s.dst = R[0] | R[1]; s.src = R[0] | R[1]
            elif base in ("v_add_co_u32","v_sub_co_u32","v_addc_co_u32","v_subb_co_u32","v_mad_u64_u32"):
                s.dst = R[0] | R[1]; s.src = set().union(*R[2:])
            else:
                s.dst = R[0]; s.src = set().union(*R[1:]) if len(R) > 1 else set()
                if base in ("v_fmac_f32","v_dot2c_f32_bf16","v_writelane_b32"): s.src |= R[0]
                if s.dpp and not ("row_mask:0xf" in mods and "bank_mask:0xf" in mods): s.src |= R[0]
            return
        if op.startswith(("buffer_","global_","flat_")):
            s.kind = "vmem"
            if "_load" in op and "lds" not in op and " lds" not in (" "+mods):
                s.dst = R[0]; s.src = set().union(*R[1:])
            else:
                s.src = set().union(*R) if R else set()
                if "store" in op and ("x4" in op or "x3" in op):
                    s.stdata = R[0] if op.startswith("buffer_") else R[1]
                if "atomic" in op and "sc0" in mods:
                    s.dst = R[0]
            return
        if op.startswith("ds_"):
            s.kind = "ds"
            if op.startswith(("ds_read","ds_bpermute","ds_permute","ds_swizzle")):
                s.dst = R[0]; s.src = set().union(*R[1:])
            else: s.src = set().union(*R)
            return
        if op.startswith("s_"):
            s.kind = "salu"
            if op.startswith(("s_cmp","s_waitcnt","s_barrier","s_sleep","s_setprio","s_bitcmp")):
                s.src = set().union(*R) if R else set()
            else:
                s.dst = R[0] if R else set(); s.src = set().union(*R[1:]) if len(R) > 1 else set()
            return
        raise ValueError("cannot parse: " + text)
def isv(r): return r[0] in "va"
def need(P, C):
    n = 0
    if P.kind == "valu":
        vd = {r for r in P.dst if isv(r)}; sd = {r for r in P.dst if r[0] == "s"}
        if C.kind == "mfma" and vd & C.src: n = max(n, 2)
        if C.kind == "valu":
            if C.dpp and vd & C.src: n = max(n, 2)
            if C.base.startswith("v_permlane") and vd & C.src: n = max(n, 2)
            if P.trans and not C.trans and vd & C.src: n = max(n, 1)
            if P.trans and C.trans and vd & C.src: n = max(n, 1)
            if C.base in ("v_readlane_b32","v_readfirstlane_b32") and vd & C.src: n = max(n, 1)
            if sd & C.src: n = max(n, 4 if C.base in ("v_readlane_b32","v_writelane_b32") else 2)
            if P.base.startswith("v_dot") and vd & (C.src | C.dst) and not (C.base == P.base): n = max(n, 3)
        if P.trans and C.kind in ("vmem","ds") and vd & C.src: n = max(n, 1)
        if C.kind == "vmem" and sd & C.src: n = max(n, 5)
        if C.kind == "salu" and sd & C.src: n = max(n, 1)
    if P.kind == "mfma":
        big = {4: 8, 8: 12}[P.passes]
        if C.kind == "mfma":
            if P.dst & C.srcAB: n = max(n, big)
            if P.dst & C.srcC and not (P.dst == C.srcC): n = max(n, big - 2)
            if P.dst & C.dst and not (P.dst == C.srcC): n = max(n, big)
        elif C.kind in ("valu","vmem","ds"):
            if P.dst & (C.src | C.dst): n = max(n, big)
            if C.kind == "valu" and P.srcC & C.dst: n = max(n, {4: 3, 8: 7}[P.passes])
    if P.kind == "vmem" and P.stdata:
        if P.stdata & C.dst: n = max(n, 2)
    if P.kind == "salu" and ("s",124) in P.dst and C.kind == "vmem" and ("lds" in C.op or "lds" in C.mods): n = max(n, 1)
    return n
def fix_hazards(lines):
    ins = [I(l) for l in lines]
    changed = True
    total = 0
    while changed:
        changed = False
        labels = {x.label: i for i, x in enumerate(ins) if x.label}
        jumps = {}
        for i, x in enumerate(ins):
            if x.kind == "branch": jumps.setdefault(labels[x.target], []).append(i)
        def preds(i):
            r = []
            if i > 0 and not (ins[i-1].kind == "end" or ins[i-1].op == "s_branch"): r.append(i-1)
            r += jumps.get(i, [])
            return r
        for i, C in enumerate(ins):
            if C.kind in ("none","branch","end"): continue
            short = 0
            stack = [(p, 0) for p in preds(i)]; seen = {}
            while stack:
                p, d = stack.pop()
                if d >= 12: continue
                if p in seen and seen[p] <= d: continue
                seen[p] = d
                P = ins[p]
                if P.kind not in ("none","branch","end"):
                    short = max(short, need(P, C) - d)
                for q in preds(p): stack.append((q, d + P.ws))
            if short > 0:
                ins.insert(i, I(f"s_nop {short-1}"))
                total += 1
                changed = True
                break
    return [x.text for x in ins], total
class Asm:
    def __init__(s):
        s.L = []; s.vm = []
    def __call__(s, t):
        for l in t.strip().split("\n"):
            s.L.append(l.strip())
    def vmem(s, text, name, role=None):
        s.L.append(text); s.vm.append((name, role))
    def wait(s, name, role=None, extra=""):
        idx = max(i for i, (n, r) in enumerate(s.vm) if n == name)
        n = sum(1 for (nn, r) in s.vm[idx+1:] if r is None or (role is not None and r == role))
        assert n < 64
        s.L.append(f"s_waitcnt vmcnt({n}) {extra}".strip())
        return n
```

```python
import sys, struct, math
from asmlib import Asm, fix_hazards
KN = "gated_mix__sliding_block_cached__geglu_ffn__decode_kernel"
def f2u(x): return struct.unpack("<I", struct.pack("<f", x))[0]
LOG2E = 1.4426950408889634
TAGM = 0x3ff
QP, GP, OP, YA, YF = 0x10000, 0x50000, 0x90000, 0xD0000, 0x100000
DPPF = "row_mask:0xf bank_mask:0xf"
HEADER = open("gated_mix__sliding_block_cached__geglu_ffn__decode.s.ref").read().split("; Override launch")[0]

def gen(D=10, stamps=False, rot=(5,3), pol="nt", SPIN=200000):
    a = Asm()
    nst = [0]
    def stamp(k):
        if stamps: a(f"s_memrealtime s[{80+2*k}:{81+2*k}]")
    def vr(b, n=4): return f"v[{b}:{b+n-1}]"
    def ar(b, n=4): return f"a[{b}:{b+n-1}]"
    def tagcheck(base, n, tmp):
        for i in range(n): a(f"v_xor_b32 v{base+i}, s{60+i%4}, v{base+i}")
        a(f"v_or_b32 v{tmp}, v{base}, v{base+1}")
        for i in range(2, n, 2): a(f"v_or3_b32 v{tmp}, v{tmp}, v{base+i}, v{base+i+1}")
        a(f"v_and_b32 v{tmp}, {TAGM}, v{tmp}")
        a(f"v_cmp_ne_u32 vcc, 0, v{tmp}")
    def settag(dst, src):
        for i in range(4): a(f"v_and_or_b32 v{dst+i}, v{src+i}, s76, v{8+i}")
    def rnd2(x, y, tmp):
        a(f"v_cvt_pk_bf16_f32 v{tmp}, v{x}, v{y}")
        a(f"v_lshlrev_b32 v{x}, 16, v{tmp}")
        a(f"v_and_b32 v{y}, 0xffff0000, v{tmp}")
    slow = []

    a(f"{KN}:")
    stamp(0)
    a("s_cmp_ge_u32 s2, 256")
    a("s_cbranch_scc1 L_exit")
    a("s_load_dwordx16 s[4:19], s[0:1], 0")
    a("s_load_dwordx8 s[20:27], s[0:1], 64")
    a("s_load_dwordx2 s[28:29], s[0:1], 96")
    a("s_getpc_b64 s[30:31]")
    a("L_pc:")
    a("v_lshrrev_b32 v1, 1, v0")
    a("v_lshlrev_b32 v1, 7, v1")
    a("v_min_u32 v1, L_last-L_pc, v1")
    a.vmem("global_load_dword v3, v1, s[30:31]", "pf")
    a("v_lshrrev_b32 v1, 6, v0")
    a("v_and_b32 v0, 63, v0")
    a("v_readfirstlane_b32 s34, v1")
    a("s_and_b32 s32, s2, 31")
    a("s_lshr_b32 s33, s2, 5")
    a("v_lshrrev_b32 v1, 4, v0")
    a("v_and_b32 v2, 15, v0")
    a("s_mul_i32 s35, s33, 80")
    a("s_mul_i32 s3, s34, 20")
    a("s_add_u32 s35, s35, s3")
    a("s_mov_b32 s42, %d" % (640*8192)); a("s_mov_b32 s43, 0x20000")
    a("s_lshl_b32 s3, s35, 13"); a("s_lshl_b32 s78, s32, 8"); a("s_add_u32 s3, s3, s78")
    a("v_lshlrev_b32 v13, 4, v2")
    a("v_add_u32 v33, s3, v13")
    a("v_lshl_add_u32 v32, v1, 15, v33")
    a("v_lshl_add_u32 v33, v1, 13, v33")
    a("v_lshrrev_b32 v44, 3, v2")
    a("v_mul_u32_u24 v45, 1280, v44")
    a("s_lshl_b32 s3, s35, 1")
    a("v_add_u32 v45, s3, v45")
    a("v_lshl_add_u32 v46, v1, 3, v45")
    a("v_lshl_add_u32 v47, v1, 1, v45")
    a("s_mul_i32 s3, s35, 3456"); a("s_lshl_b32 s78, s32, 7"); a("s_add_u32 s3, s3, s78")
    a("v_and_b32 v42, 0x70, v13")
    a("v_add_u32 v42, s3, v42")
    a("v_mul_u32_u24 v43, 3456, v1")
    a("v_lshl_add_u32 v40, v43, 2, v42")
    a("v_add_u32 v40, 3456, v40")
    a("v_add_u32 v41, v43, v42")
    a("v_add_u32 v41, %d, v41" % (16*3456))
    a("s_mov_b32 s78, 8192"); a("s_mov_b32 s79, 16384"); a("s_mov_b32 s66, 24576"); a("s_mov_b32 s67, %d" % (16*8192))
    a("s_waitcnt lgkmcnt(0)")
    stamp(1)
    a("s_mov_b64 s[40:41], s[10:11]")
    a("s_load_dwordx4 s[36:39], s[28:29], 0")
    for t, so in enumerate(["0", "s78", "s79", "s66"]):
        a.vmem(f"buffer_load_dwordx4 {vr(64+4*t)}, v32, s[40:43], {so} offen {pol}", f"wq{t}")
    a.vmem(f"buffer_load_dwordx4 {vr(80)}, v33, s[40:43], s67 offen {pol}", "wq4")
    a("s_cmp_ge_u32 s32, 27")
    a("s_cbranch_scc1 L_nogu1")
    a("v_mov_b32 v34, s16"); a("v_mov_b32 v35, s17")
    a("s_mov_b32 exec_lo, 0xff00ff00"); a("s_mov_b32 exec_hi, 0xff00ff00")
    a("v_mov_b32 v34, s18"); a("v_mov_b32 v35, s19")
    a("s_mov_b64 exec, -1")
    a("v_add_co_u32 v36, vcc, v34, v40"); a("v_addc_co_u32 v37, vcc, 0, v35, vcc")
    for t in range(3):
        a.vmem(f"global_load_dwordx4 {vr(84+4*t)}, v[36:37], off offset:{(t-1)*3456} {pol}", f"gu{t}", "gu")
    a("v_add_co_u32 v36, vcc, 6912, v36"); a("v_addc_co_u32 v37, vcc, 0, v37, vcc")
    a.vmem(f"global_load_dwordx4 {vr(96)}, v[36:37], off {pol}", "gu3", "gu")
    a("v_add_co_u32 v38, vcc, v34, v41"); a("v_addc_co_u32 v39, vcc, 0, v35, vcc")
    a.vmem(f"global_load_dwordx4 {vr(100)}, v[38:39], off {pol}", "gu4", "gu")
    a("L_nogu1:")
    a.vmem("global_load_dwordx2 v[16:17], v46, s[4:5]", "x0")
    a.vmem("global_load_ushort v18, v47, s[4:5] offset:32", "x1")
    a("s_mov_b64 s[44:45], s[6:7]"); a("s_mov_b32 s46, 0x8000000"); a("s_mov_b32 s47, 0x20000")
    a("s_mov_b64 s[48:49], s[8:9]"); a("s_mov_b32 s50, 0x8000000"); a("s_mov_b32 s51, 0x20000")
    a("s_lshr_b32 s3, s33, 2"); a("s_lshl_b32 s3, s3, 5"); a("s_add_u32 s3, s3, s32"); a("s_lshl_b32 s3, s3, 21")
    a("s_and_b32 s78, s33, 3"); a("s_lshl_b32 s78, s78, 17"); a("s_add_u32 s3, s3, s78")
    a("s_lshl_b32 s78, s34, 10"); a("s_add_u32 s3, s3, s78"); a("s_add_u32 s3, s3, %d" % (6144*256))
    a("v_lshlrev_b32 v12, 6, v2"); a("v_lshl_add_u32 v12, v1, 4, v12"); a("v_add_u32 v12, s3, v12")
    a("v_lshl_add_u32 v13, v0, 4, s3")
    a(f"s_mul_i32 s3, s32, {rot[0]}"); a(f"s_mul_i32 s78, s33, {rot[1]}"); a("s_add_u32 s3, s3, s78")
    a("s_and_b32 s3, s3, 31"); a("s_lshl_b32 s3, s3, 12")
    stream = [("K", i) for i in range(32)] + [("q", 0)] + [("V", i) for i in range(32)] + [("ml", 0)] + [("C", i) for i in range(8)]
    pos = [0]
    def vreg(i): return vr(64+4*i) if i < 16 else ar(4*(i-16))
    def qpoll(track):
        for e in range(2):
            for hf in range(2):
                t = f"global_load_dwordx4 {vr(16+8*e+4*hf)}, v3, s[28:29] offset:{e*1024+hf*16} sc1"
                if track: a.vmem(t, "q")
                else: slow.append(t)
    def issue(n=1):
        for _ in range(n):
            if pos[0] >= len(stream): return
            k, i = stream[pos[0]]; pos[0] += 1
            if k == "K" or k == "V":
                if k == "K": a.vmem(f"buffer_load_dwordx4 {ar(4*i)}, v12, s[44:47], s3 offen {pol}", f"K{i}")
                else:
                    assert i < 16 or qkdone[0]
                    a.vmem(f"buffer_load_dwordx4 {vreg(i)}, v13, s[48:51], s3 offen {pol}", f"V{i}")
                a("s_add_u32 s3, s3, 4096"); a("s_and_b32 s3, s3, 0x1ffff")
            elif k == "q": qpoll(True)
            elif k == "ml":
                a.vmem("global_load_dwordx4 v[28:31], v44, s[28:29] offset:512 sc1", "ml")
            elif k == "C":
                a.vmem(f"buffer_load_dwordx4 {ar(64+4*i)}, v14, s[52:55], {'s66' if i < 4 else 's67'} offen offset:{(i%4)*1280} {pol}", f"C{i}")
    qkdone = [False]
    def issue_until(kind, idx):
        tgt = stream.index((kind, idx))
        while pos[0] <= tgt: issue()
    pre = max(2, D-8)
    issue(pre)
    a("v_and_b32 v8, 3, v2"); a("v_lshlrev_b32 v8, 4, v8")
    a("v_mov_b32 v10, 0xffff"); a("v_mov_b32 v11, 0")
    a("v_lshlrev_b64 v[10:11], v8, v[10:11]")
    a("s_mov_b32 vcc_lo, 0x0f0f0f0f"); a("s_mov_b32 vcc_hi, 0x0f0f0f0f")
    a("v_cndmask_b32 v4, 0, v10, vcc"); a("v_cndmask_b32 v5, 0, v11, vcc")
    a("v_xor_b32 v6, v4, v10"); a("v_xor_b32 v7, v5, v11")
    a("v_lshrrev_b32 v15, 1, v1"); a("v_lshlrev_b32 v15, 9, v15"); a("v_lshl_add_u32 v15, v2, 5, v15")
    a("v_and_b32 v8, 1, v1"); a("v_lshl_add_u32 v15, v8, 4, v15")
    a("v_mul_u32_u24 v14, 10240, v1"); a("v_lshl_add_u32 v14, v2, 4, v14")
    a("s_mov_b32 s55, 0x20000"); a("s_mov_b32 s77, %d" % SPIN); a("s_mov_b32 s76, 0x%x" % (0xffffffff ^ TAGM))
    a("s_cmp_ge_u32 s33, 5"); a("s_cbranch_scc1 L_role1")
    a("s_mov_b32 s64, 0")
    a("s_mov_b64 s[52:53], s[12:13]"); a("s_mov_b32 s54, %d" % (4096*1280))
    a("s_lshl_b32 s66, s32, 2"); a("s_add_u32 s66, s66, s34"); a("s_mul_i32 s66, s66, %d" % (32*1280))
    a("s_mov_b32 s65, s33")
    a("s_branch L_role2")
    a("L_role1:")
    a("s_mov_b64 s[52:53], s[20:21]"); a("s_mov_b32 s54, 0"); a("s_mov_b32 s64, 3")
    a("s_sub_u32 s78, s33, 5")
    a("s_cmp_ge_u32 s32, 27"); a("s_cbranch_scc1 L_role3")
    a("s_lshl_b32 s78, s78, 2"); a("s_add_u32 s78, s78, s34")
    a("s_lshr_b32 s65, s78, 1")
    a("s_lshl_b32 s66, s32, 1"); a("s_and_b32 s79, s78, 1"); a("s_add_u32 s66, s66, s79"); a("s_mul_i32 s66, s66, %d" % (32*1280))
    a("s_cmp_ge_u32 s78, 10"); a("s_cbranch_scc1 L_role2")
    a("s_mov_b32 s64, 1"); a("s_mov_b32 s54, %d" % (1728*1280))
    a("s_branch L_role2")
    a("L_role3:")
    a("s_sub_u32 s79, s32, 27"); a("s_mul_i32 s79, s79, 3"); a("s_add_u32 s78, s78, s79"); a("s_mul_i32 s78, s78, 3")
    a("s_add_u32 s65, s78, s34"); a("s_sub_u32 s65, s65, 1")
    a("s_mov_b32 s66, 0"); a("s_mov_b32 s67, 0")
    a("s_cmp_eq_u32 s34, 0"); a("s_cbranch_scc1 L_role4")
    a("s_cmp_ge_u32 s65, 40"); a("s_cbranch_scc1 L_role4")
    a("s_mov_b32 s64, 2")
    a("s_branch L_role4")
    a("L_role2:")
    a("s_lshl_b32 s78, s65, 8"); a("s_add_u32 s66, s66, s78"); a("s_add_u32 s67, s66, 5120")
    a("L_role4:")
    for t in range(4):
        a(f"s_mov_b32 s{68+2*t}, 0x{0x000f000f << (4*t):x}"); a(f"s_mov_b32 s{69+2*t}, 0x{0x000f000f << (4*t):x}")
    a("s_mov_b32 s78, 0x01000100"); a("s_mov_b32 s79, 0x03020302")
    a("v_lshlrev_b32 v48, 4, v0"); a("s_lshl_b32 s35, s34, 11"); a("v_add_u32 v49, s35, v48")
    a("s_lshl_b32 s35, s34, 10"); a("v_add_u32 v48, s35, v48")
    a.wait("x1")
    stamp(2)
    a("v_perm_b32 v19, v16, v16, s78"); a("v_perm_b32 v20, v16, v16, s79")
    a("v_perm_b32 v21, v17, v17, s78"); a("v_perm_b32 v22, v17, v17, s79"); a("v_perm_b32 v23, v18, v18, s78")
    for t in range(5):
        A = 56 + 4*(t % 2)
        for q in range(4): a(f"v_and_b32 v{A+q}, v{19+t}, v{4+q}")
        issue(2 if t < 4 else 0)
        c0 = "0" if t == 0 else vr(24); c1 = "0" if t == 0 else vr(28)
        a(f"v_mfma_f32_16x16x32_bf16 {vr(24)}, {vr(A)}, {vr(64+4*t)}, {c0}")
        a(f"v_mfma_f32_16x16x32_bf16 {vr(28)}, {vr(A)}, {vr(84+4*t)}, {c1}")
    a(f"ds_write_b128 v49, {vr(24)}"); a(f"ds_write_b128 v49, {vr(28)} offset:1024")
    a("s_waitcnt lgkmcnt(0)"); a("s_barrier")
    for i in range(4):
        a(f"s_add_u32 s{36+i}, s{36+i}, 1"); a(f"s_and_b32 s{60+i}, s{36+i}, {TAGM}"); a(f"v_mov_b32 v{8+i}, s{60+i}")
    a("s_cmp_ge_u32 s34, 2"); a("s_cbranch_scc1 L_noApub")
    for p in range(4): a(f"ds_read_b128 {vr(32+4*p)}, v48 offset:{p*2048}")
    a("s_lshl_b32 s35, s32, 3"); a("s_add_u32 s35, s35, s33"); a("s_lshl_b32 s35, s35, 10")
    a(f"s_mul_i32 s78, s34, {GP-QP}"); a("s_add_u32 s35, s35, s78"); a(f"s_add_u32 s35, s35, {QP}")
    a("v_add_u32 v3, s35, v15")
    a("s_waitcnt lgkmcnt(0)")
    for i in range(4):
        a(f"v_add_f32 v{32+i}, v{32+i}, v{36+i}"); a(f"v_add_f32 v{40+i}, v{40+i}, v{44+i}")
    for i in range(4): a(f"v_add_f32 v{32+i}, v{32+i}, v{40+i}")
    settag(32, 32)
    a.vmem(f"global_store_dwordx4 v3, {vr(32)}, s[28:29] sc1", "Apub", "Apub")
    a("L_noApub:")
    stamp(3)
    a("s_lshl_b32 s35, s32, 13"); a("s_lshr_b32 s78, s33, 2"); a("s_lshl_b32 s78, s78, 9"); a("s_add_u32 s35, s35, s78"); a(f"s_add_u32 s35, s35, {QP}")
    a("v_lshrrev_b32 v3, 2, v2"); a("v_lshlrev_b32 v3, 11, v3"); a("v_and_b32 v16, 3, v2"); a("v_lshl_add_u32 v3, v16, 7, v3"); a("v_lshl_add_u32 v3, v1, 5, v3")
    a("v_add_u32 v3, s35, v3")
    while stream[pos[0]] != ("V", min(D, 12)):
        k, i = stream[pos[0]]
        if pos[0] - D >= 0 and stream[pos[0]-D][0] == "K": a.wait(f"K{stream[pos[0]-D][1]}")
        issue()
    a.wait("q")
    stamp(4)
    a("L_qchk:")
    tagcheck(16, 16, 32)
    a("s_cbranch_vccnz L_qretry")
    a("L_qok:")
    slow.append("L_qretry:"); qpoll(False)
    slow += ["s_sub_u32 s77, s77, 1", "s_waitcnt vmcnt(0)", "s_cbranch_scc1 L_exit", "s_branch L_qchk"]
    for i in range(8): a(f"v_add_f32 v{16+i}, v{16+i}, v{24+i}")
    for i in range(8): a(f"v_add_f32_dpp v{16+i}, v{16+i}, v{16+i} row_ror:8 {DPPF}")
    for i in range(8): a(f"v_add_f32_dpp v{16+i}, v{16+i}, v{16+i} row_ror:4 {DPPF}")
    for i in range(4): a(f"v_cvt_pk_bf16_f32 v{24+i}, v{16+2*i}, v{17+2*i}")
    for t in range(4):
        for i in range(4): a(f"v_cndmask_b32_e64 v{32+4*t+i}, 0, v{24+i}, s[{68+2*t}:{69+2*t}]")
    issue()
    for half in range(2):
        for t in range(4):
            for uu in range(4):
                u = half*4 + uu
                c = "0" if t == 0 else vr(16+4*uu)
                a(f"v_mfma_f32_16x16x32_bf16 {vr(16+4*uu)}, {ar(16*u+4*t)}, {vr(32+4*t)}, {c}")
        issue()
        for jj in range(4):
            for uu in range(4):
                u = half*4 + uu
                if jj == 0: a(f"v_mov_b32_dpp v{48+u}, v{16+4*uu} quad_perm:[0,0,0,0] {DPPF}")
                else: a(f"v_add_f32_dpp v{48+u}, v{16+4*uu+jj}, v{48+u} quad_perm:[{jj},{jj},{jj},{jj}] {DPPF}")
    qkdone[0] = True
    for u in range(0, 8, 2): rnd2(48+u, 49+u, 16+u)
    for u in range(8): a(f"v_mul_f32 v{48+u}, 0x{f2u(128**-0.5):x}, v{48+u}")
    for u in range(0, 8, 2): rnd2(48+u, 49+u, 16+u)
    issue()
    a("v_max3_f32 v16, v48, v49, v50"); a("v_max3_f32 v17, v51, v52, v53"); a("v_max3_f32 v16, v16, v54, v55"); a("v_max_f32 v16, v16, v17")
    a(f"v_max_f32_dpp v16, v16, v16 row_ror:8 {DPPF}"); a(f"v_max_f32_dpp v16, v16, v16 row_ror:4 {DPPF}")
    a("v_max_f32_dpp v16, v16, v16 row_bcast:15 row_mask:0xa bank_mask:0xf")
    a("v_max_f32_dpp v16, v16, v16 row_bcast:31 row_mask:0xc bank_mask:0xf")
    a(f"v_mul_f32 v16, 0x{f2u(LOG2E):x}, v16")
    a("v_readlane_b32 s35, v16, 63")
    a(f"v_mov_b32 v17, 0x{f2u(LOG2E):x}")
    for u in range(8): a(f"v_fma_f32 v{48+u}, v{48+u}, v17, -s35")
    for u in range(8): a(f"v_exp_f32 v{48+u}, v{48+u}")
    a("v_add_f32 v18, v48, v49"); a("v_add_f32 v19, v50, v51"); a("v_add_f32 v20, v52, v53"); a("v_add_f32 v21, v54, v55")
    a("v_add_f32 v18, v18, v19"); a("v_add_f32 v20, v20, v21"); a("v_add_f32 v17, v18, v20")
    for u in range(8): a(f"v_cvt_pk_bf16_f32 v{48+u}, v{48+u}, v{48+u}")
    a(f"v_add_f32_dpp v17, v17, v17 row_ror:8 {DPPF}"); a(f"v_add_f32_dpp v17, v17, v17 row_ror:4 {DPPF}")
    a("v_add_f32_dpp v17, v17, v17 row_bcast:15 row_mask:0xa bank_mask:0xf")
    a("v_add_f32_dpp v17, v17, v17 row_bcast:31 row_mask:0xc bank_mask:0xf")
    a("s_lshl_b32 s35, s34, 3"); a("s_add_u32 s35, s35, 8192"); a("v_mov_b32 v18, s35")
    a("s_mov_b32 exec_lo, 0"); a("s_mov_b32 exec_hi, 0x80000000")
    a("ds_write_b64 v18, v[16:17]")
    a("s_mov_b64 exec, -1")
    stamp(5)
    a("v_lshrrev_b32 v44, 3, v2"); a("v_lshlrev_b32 v44, 2, v44"); a("v_and_b32 v45, 3, v2"); a("v_add_u32 v44, v44, v45"); a("v_lshlrev_b32 v44, 10, v44")
    a("s_lshl_b32 s35, s32, 13"); a(f"s_add_u32 s35, s35, {OP}"); a("v_add_u32 v44, s35, v44")
    a("v_and_b32 v45, 4, v2"); a("v_lshlrev_b32 v45, 2, v45"); a("v_lshl_add_u32 v45, v1, 5, v45"); a("s_lshl_b32 s78, s34, 7"); a("v_add3_u32 v45, v45, s78, v44")
    a("s_lshl_b32 s78, s33, 10"); a("s_add_u32 s35, s35, s78"); a("v_add_u32 v46, s35, v15")
    a("v_lshlrev_b32 v47, 4, v0"); a("s_lshl_b32 s78, s34, 10"); a("v_add_u32 v47, s78, v47")
    base = stream.index(("V", 0))
    R_ISSUE, R_USE = 3, 3 + D + 1
    def gupoll(track):
        for gu in range(2):
            for hf in range(2):
                t = f"global_load_dwordx4 {vr(16+8*gu+4*hf)}, v3, s[28:29] offset:{gu*256+hf*16} sc1"
                if track: a.vmem(t, "gup", "ffn")
                else: slow.append(t)
    for i in range(32):
        u, t = i >> 2, i & 3
        A = 56 + 4*(i % 2)
        for q in range(4): a(f"v_and_b32_dpp v{A+q}, v{48+u}, v{4+q} row_newbcast:{4*t} {DPPF}")
        while pos[0] <= min(base + i + D, len(stream)-1) or (i == 31 and pos[0] < len(stream)): issue()
        if i == 1:
            a("s_waitcnt lgkmcnt(0)"); a("s_barrier")
            a("s_cmp_lg_u32 s34, 0"); a("s_cbranch_scc1 L_noml")
            a("v_mov_b32 v16, 8192")
            a("ds_read_b128 v[20:23], v16"); a("ds_read_b128 v[24:27], v16 offset:16")
            a("s_waitcnt lgkmcnt(0)")
            a("v_max3_f32 v16, v20, v22, v24"); a("v_max_f32 v16, v16, v26")
            for w in range(4): a(f"v_sub_f32 v{40+w}, v{20+2*w}, v16")
            for w in range(4): a(f"v_exp_f32 v{40+w}, v{40+w}")
            a("v_mul_f32 v18, v40, v21"); a("v_fmac_f32 v18, v41, v23"); a("v_fmac_f32 v18, v42, v25"); a("v_fmac_f32 v18, v43, v27")
            a("v_mov_b32 v17, s36"); a("v_mov_b32 v19, s37")
            a("s_mov_b64 exec, 1")
            a.vmem("global_store_dwordx4 v46, v[16:19], s[28:29] offset:512 sc1", "mlpub", "lead")
            a("s_mov_b64 exec, -1")
            a("L_noml:")
        if i == R_ISSUE:
            a("s_cmp_eq_u32 s64, 1"); a("s_cbranch_scc0 L_ri1")
            a("s_lshl_b32 s35, s32, 13"); a(f"s_add_u32 s35, s35, {GP}"); a("s_and_b32 s78, s34, 1"); a("s_lshl_b32 s78, s78, 7"); a("s_add_u32 s35, s35, s78")
            a("v_and_b32 v3, 7, v2"); a("v_lshlrev_b32 v3, 10, v3"); a("v_lshrrev_b32 v16, 3, v2"); a("v_lshl_add_u32 v3, v16, 9, v3"); a("v_lshl_add_u32 v3, v1, 5, v3")
            a("v_add_u32 v3, s35, v3")
            gupoll(True)
            a("L_ri1:")
            a("s_cmp_eq_u32 s64, 2"); a("s_cbranch_scc0 L_ri2")
            a("s_cmp_ge_u32 s65, 20"); a("s_cselect_b32 s35, 1280, 0")
            a("v_lshlrev_b32 v3, 4, v0"); a("v_add_u32 v36, s35, v3")
            for k in range(8): a(f"v_mov_b32 v{24+k}, 0")
            a.vmem("global_load_dwordx4 v[16:19], v36, s[4:5]", "fx", "fin")
            a.vmem("global_load_dwordx4 v[20:23], v3, s[22:23]", "fx", "fin")
            a("s_mov_b64 exec, 0xffff")
            a.vmem("global_load_dwordx4 v[24:27], v36, s[4:5] offset:1024", "fx", "fin")
            a.vmem("global_load_dwordx4 v[28:31], v3, s[22:23] offset:1024", "fx", "fin")
            a("s_mov_b64 exec, -1")
            a("L_ri2:")
        if i == R_USE:
            assert pos[0] <= stream.index(("ml", 0))
            a("s_cmp_eq_u32 s64, 1"); a("s_cbranch_scc0 L_ru1")
            a.wait("gup", "ffn")
            a("L_gchk:")
            tagcheck(16, 16, 36)
            a("s_cbranch_vccnz L_gretry")
            a("L_gok:")
            slow.append("L_gretry:"); gupoll(False)
            slow.extend(["s_sub_u32 s77, s77, 1", "s_waitcnt vmcnt(0)", "s_cbranch_scc1 L_exit", "s_branch L_gchk"])
            for b0 in (16, 24):
                for k in range(4): a(f"v_add_f32_dpp v{b0+k}, v{b0+k}, v{b0+k} row_half_mirror row_mask:0xf bank_mask:0x5")
            for b0 in (16, 24):
                for k in range(4): a(f"v_add_f32_dpp v{b0+k}, v{b0+4+k}, v{b0+4+k} row_half_mirror row_mask:0xf bank_mask:0xa")
            for qp in ("[1,0,3,2]", "[2,3,0,1]"):
                for b0 in (16, 24):
                    for k in range(4): a(f"v_add_f32_dpp v{b0+k}, v{b0+k}, v{b0+k} quad_perm:{qp} {DPPF}")
            rnd2(16, 17, 20); rnd2(18, 19, 21); rnd2(24, 25, 22); rnd2(26, 27, 23)
            c1 = -2*math.sqrt(2/math.pi)*LOG2E; c2 = c1*0.044715
            a(f"v_mov_b32 v28, 0x{f2u(c1):x}"); a(f"s_mov_b32 s35, 0x{f2u(c2):x}")
            for k in range(4): a(f"v_mul_f32 v{20+k}, v{16+k}, v{16+k}")
            for k in range(4): a(f"v_fma_f32 v{20+k}, v{20+k}, s35, v28")
            for k in range(4): a(f"v_mul_f32 v{20+k}, v{20+k}, v{16+k}")
            for k in range(4): a(f"v_exp_f32 v{20+k}, v{20+k}")
            for k in range(4): a(f"v_add_f32 v{20+k}, 1.0, v{20+k}")
            for k in range(4): a(f"v_rcp_f32 v{20+k}, v{20+k}")
            for k in range(4): a(f"v_mul_f32 v{16+k}, v{16+k}, v{20+k}")
            rnd2(16, 17, 20); rnd2(18, 19, 21)
            for k in range(4): a(f"v_mul_f32 v{16+k}, v{16+k}, v{24+k}")
            for k in range(4): a(f"v_cvt_pk_bf16_f32 v{36+k}, v{16+k}, v{16+k}")
            a("L_ru1:")
            a("s_cmp_eq_u32 s64, 2"); a("s_cbranch_scc0 L_ru2")
            a.wait("fx", "fin")
            a("v_mov_b32 v36, 0")
            for xb, wb in ((16, 20), (24, 28)):
                for k in range(4):
                    a(f"v_lshlrev_b32 v37, 16, v{xb+k}"); a(f"v_lshlrev_b32 v38, 16, v{wb+k}"); a("v_mul_f32 v37, v37, v38")
                    a(f"v_and_b32 v38, 0xffff0000, v{xb+k}"); a(f"v_and_b32 v39, 0xffff0000, v{wb+k}"); a("v_mul_f32 v38, v38, v39")
                    rnd2(37, 38, 39)
                    a("v_add_f32 v36, v36, v37"); a("v_add_f32 v36, v36, v38")
            for m in ("quad_perm:[1,0,3,2]", "quad_perm:[2,3,0,1]", "row_half_mirror", "row_mirror"):
                a(f"v_add_f32_dpp v36, v36, v36 {m} {DPPF}")
            a("v_add_f32_dpp v36, v36, v36 row_bcast:15 row_mask:0xa bank_mask:0xf")
            a("v_add_f32_dpp v36, v36, v36 row_bcast:31 row_mask:0xc bank_mask:0xf")
            a("v_readlane_b32 s35, v36, 63")
            a("v_cvt_pk_bf16_f32 v36, s35, s35"); a("v_lshlrev_b32 v36, 16, v36")
            a(f"v_mul_f32 v36, 0x{f2u(-LOG2E):x}, v36"); a("v_exp_f32 v36, v36"); a("v_add_f32 v36, 1.0, v36"); a("v_rcp_f32 v36, v36")
            a("v_cvt_pk_bf16_f32 v36, v36, v36"); a("v_lshlrev_b32 v36, 16, v36")
            a("v_sub_f32 v37, 1.0, v36"); a("v_cvt_pk_bf16_f32 v37, v37, v37"); a("v_lshlrev_b32 v37, 16, v37")
            a("L_ru2:")
        a.wait(f"V{i}")
        if i == 31: stamp(6)
        c = "0" if i == 0 else vr(32)
        a(f"v_mfma_f32_16x16x32_bf16 {vr(32)}, {vr(A)}, {vreg(i)}, {c}")
    a(f"ds_write_b128 v47, {vr(32)}")
    a("s_waitcnt lgkmcnt(0)"); a("s_barrier")
    a("s_cmp_lg_u32 s34, 0"); a("s_cbranch_scc1 L_noopub")
    for p in range(1, 4): a(f"ds_read_b128 {vr(12+4*p)}, v47 offset:{p*1024}")
    for k in range(4): a(f"v_mul_f32 v{32+k}, v40, v{32+k}")
    a("s_waitcnt lgkmcnt(0)")
    for p in range(1, 4):
        for k in range(4): a(f"v_fmac_f32 v{32+k}, v{40+p}, v{12+4*p+k}")
    settag(32, 32)
    a("s_mov_b32 exec_hi, 0")
    a.vmem(f"global_store_dwordx4 v46, {vr(32)}, s[28:29] sc1", "opub", "lead")
    a("s_mov_b32 exec_hi, -1")
    a("L_noopub:")
    stamp(7)
    a("s_cmp_eq_u32 s64, 0"); a("s_cbranch_scc0 L_notwo")
    a.vmem("global_load_dwordx4 v[16:19], v45, s[28:29] sc1", "op", "wo")
    a.wait("ml", "wo")
    a("L_mchk:")
    a("v_xor_b32 v29, s36, v29"); a("v_xor_b32 v31, s37, v31"); a("v_or_b32 v29, v29, v31"); a("v_cmp_ne_u32 vcc, 0, v29")
    a("s_cbranch_vccnz L_mretry")
    a("L_mok:")
    slow.extend(["L_mretry:", "global_load_dwordx4 v[28:31], v44, s[28:29] offset:512 sc1", "s_sub_u32 s77, s77, 1", "s_waitcnt vmcnt(0)", "s_cbranch_scc1 L_exit", "s_branch L_mchk"])
    a(f"v_max_f32_dpp v29, v28, v28 quad_perm:[1,0,3,2] {DPPF}"); a(f"v_max_f32_dpp v29, v29, v29 quad_perm:[2,3,0,1] {DPPF}")
    a("v_sub_f32 v28, v28, v29"); a("v_exp_f32 v28, v28"); a("v_mul_f32 v30, v30, v28")
    a(f"v_add_f32_dpp v30, v30, v30 quad_perm:[1,0,3,2] {DPPF}"); a(f"v_add_f32_dpp v30, v30, v30 quad_perm:[2,3,0,1] {DPPF}")
    a("v_rcp_f32 v30, v30"); a("v_mul_f32 v28, v28, v30")
    a("s_branch L_ochk")
    a("L_oloop:")
    a("global_load_dwordx4 v[16:19], v45, s[28:29] sc1")
    a("s_sub_u32 s77, s77, 1"); a("s_cbranch_scc1 L_exit")
    a("L_ochk:")
    a("s_waitcnt vmcnt(0)")
    tagcheck(16, 4, 20)
    a("s_cbranch_vccnz L_oloop")
    a("L_ook:")
    stamp(8)
    for k in range(4): a(f"v_mul_f32 v{16+k}, v28, v{16+k}")
    for qp in ("[1,0,3,2]", "[2,3,0,1]"):
        for k in range(4): a(f"v_add_f32_dpp v{16+k}, v{16+k}, v{16+k} quad_perm:{qp} {DPPF}")
    for k in range(4): a(f"v_cvt_pk_bf16_f32 v{36+k}, v{16+k}, v{16+k}")
    a("L_cstage:")
    a("s_waitcnt vmcnt(0)")
    for t in range(8):
        A = 56 + 4*(t % 2); hp = t >> 2; jj = t & 3
        for q in range(4):
            if (q >> 1) == hp: a(f"v_and_b32 v{A+q}, v{36+jj}, v{4+q}")
            else: a(f"v_and_b32_dpp v{A+q}, v{36+jj}, v{4+q} row_half_mirror {DPPF}")
        if t > 0:
            c = "0" if t == 1 else vr(32)
            a(f"v_mfma_f32_16x16x32_bf16 {vr(32)}, {vr(56+4*((t-1)%2))}, {ar(64+4*(t-1))}, {c}")
    a("s_lshl_b32 s35, s65, 5"); a("s_add_u32 s35, s35, s32")
    a(f"v_mfma_f32_16x16x32_bf16 {vr(32)}, {vr(60)}, {ar(92)}, {vr(32)}")
    a("s_lshl_b32 s35, s35, 10"); a(f"s_mul_i32 s78, s64, {YF-YA}"); a("s_add_u32 s35, s35, s78"); a(f"s_add_u32 s35, s35, {YA}")
    a("v_add_u32 v3, s35, v15")
    a(f"ds_write_b128 v47, {vr(32)} offset:4096")
    a("s_waitcnt lgkmcnt(0)"); a("s_barrier")
    a("s_cmp_eq_u32 s64, 0"); a("s_cbranch_scc0 L_ffnred")
    a("s_cmp_lg_u32 s34, 0"); a("s_cbranch_scc1 L_end")
    for p in range(1, 4): a(f"ds_read_b128 {vr(12+4*p)}, v47 offset:{4096+p*1024}")
    a("s_waitcnt lgkmcnt(0)")
    for k in range(4): a(f"v_add_f32 v{32+k}, v{32+k}, v{16+k}");
    for k in range(4): a(f"v_add_f32 v{20+k}, v{20+k}, v{24+k}")
    a("L_ypub:")
    for k in range(4): a(f"v_add_f32 v{32+k}, v{32+k}, v{20+k}")
    settag(32, 32)
    a(f"global_store_dwordx4 v3, {vr(32)}, s[28:29] sc1")
    a("s_branch L_end")
    a("L_ffnred:")
    a("s_bitcmp1_b32 s34, 0"); a("s_cbranch_scc1 L_end")
    a(f"ds_read_b128 {vr(20)}, v47 offset:{4096+1024}")
    a("s_waitcnt lgkmcnt(0)")
    a("s_branch L_ypub")
    a("L_notwo:")
    a("s_cmp_eq_u32 s64, 1"); a("s_cbranch_scc1 L_cstage")
    a("s_cmp_eq_u32 s64, 2"); a("s_cbranch_scc0 L_end")
    a("s_cmp_ge_u32 s65, 20"); a("s_cselect_b32 s78, 20, 0"); a("s_cselect_b32 s79, 512, 0"); a("s_cselect_b32 s66, 1280, 0")
    a("s_sub_u32 s78, s65, s78")
    a("s_lshl_b32 s67, s78, 6"); a("s_add_u32 s66, s66, s67")
    a("s_lshr_b32 s35, s78, 2"); a("s_lshl_b32 s35, s35, 15"); a("s_add_u32 s35, s35, s79")
    a("s_and_b32 s78, s78, 3"); a("s_lshl_b32 s78, s78, 7"); a("s_add_u32 s35, s35, s78")
    a("v_lshrrev_b32 v40, 3, v0"); a("v_and_b32 v41, 7, v0"); a("v_lshlrev_b32 v41, 4, v41"); a("v_add_u32 v41, s35, v41")
    a("v_lshl_add_u32 v48, v40, 10, v41"); a(f"v_add_u32 v48, {YA}, v48")
    for t in range(1, 4): a(f"v_add_u32 v{48+t}, {8192*t}, v48")
    for t in range(3): a(f"v_add_u32 v{52+t}, {YF-YA}, v{48+t}")
    a("v_min_u32 v42, 2, v40"); a("v_lshl_add_u32 v55, v42, 10, v41"); a(f"v_add_u32 v55, {YF+24*1024}, v55")
    a("v_cmp_gt_u32 vcc, 3, v40"); a("v_cndmask_b32_e64 v43, 0, 1.0, vcc")
    a("s_mov_b64 s[56:57], s[24:25]"); a("s_mov_b32 s58, 2560"); a("s_mov_b32 s59, 0x20000")
    a("v_and_b32 v44, 7, v0"); a("v_lshl_add_u32 v44, v44, 2, v1"); a("v_lshlrev_b32 v44, 1, v44")
    def red(dst, last_w):
        for k in range(4): a(f"v_add_f32 v{16+k}, v{16+k}, v{20+k}")
        for k in range(4):
            if last_w: a(f"v_fmac_f32 v{24+k}, v43, v{28+k}")
            else: a(f"v_add_f32 v{24+k}, v{24+k}, v{28+k}")
        for k in range(4): a(f"v_add_f32 v{16+k}, v{16+k}, v{24+k}")
        a("v_permlane32_swap_b32 v16, v18"); a("v_permlane32_swap_b32 v17, v19")
        a("v_add_f32 v16, v16, v18"); a("v_add_f32 v17, v17, v19")
        a("v_permlane16_swap_b32 v16, v17")
        a("v_add_f32 v16, v16, v17")
        a(f"v_add_f32_dpp v{dst}, v16, v16 row_ror:8 {DPPF}")
    for nm, ab in (("f", 52), ("a", 48)):
        a(f"L_y{nm}:")
        for t in range(4): a(f"global_load_dwordx4 {vr(16+4*t)}, v{ab+t}, s[28:29] sc1")
        a("s_sub_u32 s77, s77, 1"); a("s_cbranch_scc1 L_exit")
        a("s_waitcnt vmcnt(0)")
        tagcheck(16, 16, 32)
        a(f"s_cbranch_vccnz L_y{nm}")
        a(f"L_y{nm}ok:")
        if nm == "f":
            stamp(8)
            red(38, True)
            a("v_cvt_pk_bf16_f32 v38, v38, v38"); a("v_lshlrev_b32 v38, 16, v38"); a("v_mul_f32 v38, v37, v38")
            a("v_cvt_pk_bf16_f32 v38, v38, v38"); a("v_lshlrev_b32 v38, 16, v38")
        else:
            red(39, False)
            a("v_cvt_pk_bf16_f32 v39, v39, v39"); a("v_lshlrev_b32 v39, 16, v39"); a("v_mul_f32 v39, v36, v39")
            a("v_cvt_pk_bf16_f32 v39, v39, v39"); a("v_lshlrev_b32 v39, 16, v39")
            a("v_add_f32 v39, v39, v38"); a("v_cvt_pk_bf16_f32 v39, v39, v39")
    a("s_mov_b32 exec_lo, 0x00ff00ff"); a("s_mov_b32 exec_hi, 0x00ff00ff")
    a("buffer_store_short v39, v44, s[56:59], s66 offen")
    a("s_cmp_lg_u32 s65, 0"); a("s_cbranch_scc1 L_end")
    a("s_mov_b64 exec, 1")
    for k in range(4): a(f"v_mov_b32 v{16+k}, s{36+k}")
    a("v_mov_b32 v20, 0")
    a("global_store_dwordx4 v20, v[16:19], s[28:29]")
    a("L_end:")
    if stamps:
        stamp(9)
        a("s_mov_b64 exec, 1")
        a("s_lshl_b32 s3, s2, 2"); a("s_add_u32 s3, s3, s34"); a("s_lshl_b32 s3, s3, 6"); a("s_add_u32 s3, s3, 0x10000000")
        a("v_mov_b32 v3, s3")
        a("s_getreg_b32 s35, hwreg(HW_REG_XCC_ID)")
        a("s_waitcnt lgkmcnt(0)")
        vals = [f"s{80+2*k}" for k in range(10)] + ["s35", "s64"]
        for q in range(3):
            for k in range(4): a(f"v_mov_b32 v{16+4*q+k}, {vals[4*q+k]}")
            a(f"global_store_dwordx4 v3, {vr(16+4*q)}, s[28:29] offset:{16*q}")
    a("L_exit:")
    a("s_endpgm")
    for l in slow: a(l)
    body, nn = fix_hazards(a.L)
    out = [HEADER.rstrip("\n"), "; @launch grid=(256,1,1) block=(256,1,1) lds=8448",
           '.amdgcn_target "amdgcn-amd-amdhsa--gfx950"', ".text", f".globl {KN}", ".p2align 8", f".type {KN},@function"]
    out += [l if l.endswith(":") else "    " + l for l in body]
    out += ["L_last:", "    s_endpgm",
            '.section .rodata,"a"', ".p2align 6", f".amdhsa_kernel {KN}",
            "  .amdhsa_next_free_vgpr 256", "  .amdhsa_next_free_sgpr 102", "  .amdhsa_accum_offset 128",
            "  .amdhsa_group_segment_fixed_size 0", "  .amdhsa_kernarg_size 104", "  .amdhsa_user_sgpr_count 2",
            "  .amdhsa_user_sgpr_kernarg_segment_ptr 1", "  .amdhsa_system_sgpr_workgroup_id_x 1", ".end_amdhsa_kernel"]
    return "\n".join(out) + "\n", nn
if __name__ == "__main__":
    s, nn = gen()
    open("gated_mix__sliding_block_cached__geglu_ffn__decode.s", "w").write(s)
    print("nops inserted", nn)
```

```python
import sys, struct, math
from asmlib import Asm, fix_hazards
KN = "gated_mix__sliding_block_cached__geglu_ffn__decode_kernel"
def f2u(x): return struct.unpack("<I", struct.pack("<f", x))[0]
LOG2E = 1.4426950408889634
TAGM = 0x3ff
QP, GP, OP, HP, GG, YY = 0x10000, 0x50000, 0x90000, 0x110000, 0x118000, 0x120000
YS = 1152
DPPF = "row_mask:0xf bank_mask:0xf"
HEADER = open("gated_mix__sliding_block_cached__geglu_ffn__decode.s.ref").read().split("; Override launch")[0]

def gen(D=16, qp=26, stamps=False, rot=(5,3), pol="nt", SPIN=200000, diag=None, nfv=256, touch=True, FP=1, FSL=0,
        ML_AT=6, outpol="", mimic=True, PRE=14, lite=False, abl=(), sync=()):
    a = Asm()
    def stamp(k):
        if (stamps or diag) and not (lite and k not in (0, 6, 9)): a(f"s_memrealtime s[{80+2*k}:{81+2*k}]")
    def vr(b, n=4): return f"v[{b}:{b+n-1}]"
    def ar(b, n=4): return f"a[{b}:{b+n-1}]"
    def tagcheck(base, n, tmp, t3="s63"):
        for i in range(n): a(f"v_xor_b32 v{base+i}, {t3 if i%4 == 3 else 's%d' % (60+i%4)}, v{base+i}")
        a(f"v_or_b32 v{tmp}, v{base}, v{base+1}")
        for i in range(2, n, 2): a(f"v_or3_b32 v{tmp}, v{tmp}, v{base+i}, v{base+i+1}")
        a(f"v_and_b32 v{tmp}, {TAGM}, v{tmp}")
        a(f"v_cmp_ne_u32 vcc, 0, v{tmp}")
    def settag(dst, src):
        for i in range(4): a(f"v_and_or_b32 v{dst+i}, v{src+i}, s76, v{8+i}")
    def rnd2(x, y, tmp):
        a(f"v_cvt_pk_bf16_f32 v{tmp}, v{x}, v{y}")
        a(f"v_lshlrev_b32 v{x}, 16, v{tmp}")
        a(f"v_and_b32 v{y}, 0xffff0000, v{tmp}")
    slow = []
    def pub(name, text, role, ex=None):
        a.vmem(text, name, role)
        a("s_bitcmp1_b32 s31, 0"); a(f"s_cbranch_scc1 L_{name}far"); a(f"L_{name}near:")
        slow.extend([f"L_{name}far:", text + " sc1", f"s_branch L_{name}near"])
    def retry(name, loads):
        slow.append(f"L_{name}retry:"); slow.extend(loads)
        slow.extend(["s_sub_u32 s77, s77, 1", "s_waitcnt vmcnt(0)", "s_cbranch_scc1 L_exit", f"s_branch L_{name}chk"])

    a(f"{KN}:")
    stamp(0)
    a("s_load_dwordx16 s[4:19], s[0:1], 0")
    a("s_load_dwordx8 s[20:27], s[0:1], 64")
    a("s_load_dwordx2 s[28:29], s[0:1], 96")
    a("s_cmp_ge_u32 s2, 256")
    a("s_cbranch_scc1 L_exit")
    a("s_getpc_b64 s[30:31]")
    a("L_pc:")
    a("v_lshrrev_b32 v1, 1, v0")
    a("v_lshlrev_b32 v1, 7, v1")
    a("v_min_u32 v1, L_last-L_pc, v1")
    a.vmem("global_load_dword v3, v1, s[30:31]", "pf")
    a("v_lshrrev_b32 v1, 6, v0")
    a("v_and_b32 v0, 63, v0")
    a("v_readfirstlane_b32 s34, v1")
    a("s_and_b32 s32, s2, 31")
    a("s_lshr_b32 s33, s2, 5")
    a("v_lshrrev_b32 v1, 4, v0")
    a("v_and_b32 v2, 15, v0")
    a("s_mul_i32 s35, s33, 80")
    a("s_mul_i32 s3, s34, 20")
    a("s_add_u32 s35, s35, s3")
    a("s_mov_b32 s42, %d" % (640*8192)); a("s_mov_b32 s43, 0x20000")
    a("s_lshl_b32 s3, s35, 13"); a("s_lshl_b32 s78, s32, 8"); a("s_add_u32 s3, s3, s78")
    a("v_lshlrev_b32 v13, 4, v2")
    a("v_add_u32 v33, s3, v13")
    a("v_lshl_add_u32 v32, v1, 15, v33")
    a("v_lshl_add_u32 v33, v1, 13, v33")
    a("v_lshrrev_b32 v44, 3, v2")
    a("v_mul_u32_u24 v45, 1280, v44")
    a("s_lshl_b32 s3, s35, 1")
    a("v_add_u32 v45, s3, v45")
    a("v_lshl_add_u32 v46, v1, 3, v45")
    a("v_lshl_add_u32 v47, v1, 1, v45")
    a("s_mul_i32 s3, s35, 3456"); a("s_lshl_b32 s78, s32, 7"); a("s_add_u32 s3, s3, s78")
    a("v_and_b32 v42, 0x70, v13")
    a("v_add_u32 v42, s3, v42")
    a("v_mul_u32_u24 v43, 3456, v1")
    a("v_lshl_add_u32 v40, v43, 2, v42")
    a("v_add_u32 v40, 3456, v40")
    a("v_add_u32 v41, v43, v42")
    a("v_add_u32 v41, %d, v41" % (16*3456))
    a("s_mov_b32 s46, 0x8000000"); a("s_mov_b32 s47, 0x20000")
    a("s_mov_b32 s50, 0x8000000"); a("s_mov_b32 s51, 0x20000")
    a("s_lshr_b32 s3, s33, 2"); a("s_lshl_b32 s3, s3, 5"); a("s_add_u32 s3, s3, s32"); a("s_lshl_b32 s3, s3, 21")
    a("s_and_b32 s78, s33, 3"); a("s_lshl_b32 s78, s78, 17"); a("s_add_u32 s3, s3, s78")
    a("s_lshl_b32 s78, s34, 10"); a("s_add_u32 s3, s3, s78"); a("s_add_u32 s3, s3, %d" % (6144*256))
    a("v_lshlrev_b32 v12, 6, v2"); a("v_lshl_add_u32 v12, v1, 4, v12"); a("v_add_u32 v12, s3, v12")
    a("v_lshl_add_u32 v13, v0, 4, s3")
    a(f"s_mul_i32 s3, s32, {rot[0]}"); a(f"s_mul_i32 s78, s33, {rot[1]}"); a("s_add_u32 s3, s3, s78")
    a("s_and_b32 s3, s3, 31"); a("s_lshl_b32 s3, s3, 12")
    a("s_mov_b32 s78, 8192"); a("s_mov_b32 s79, 16384"); a("s_mov_b32 s66, 24576"); a("s_mov_b32 s67, %d" % (16*8192))
    a("s_waitcnt lgkmcnt(0)")
    stamp(1)
    a("s_mov_b64 s[40:41], s[10:11]")
    for t, so in enumerate(["0", "s78", "s79", "s66"]):
        a.vmem(f"buffer_load_dwordx4 {vr(64+4*t)}, v32, s[40:43], {so} offen {pol}", f"wq{t}")
    a.vmem(f"buffer_load_dwordx4 {vr(80)}, v33, s[40:43], s67 offen {pol}", "wq4")
    a("s_load_dwordx4 s[36:39], s[28:29], 0")
    a("s_mov_b64 s[44:45], s[6:7]"); a("s_mov_b64 s[48:49], s[8:9]")
    a("s_cmp_ge_u32 s32, 27")
    a("s_cbranch_scc1 L_nogu1")
    a("v_mov_b32 v34, s16"); a("v_mov_b32 v35, s17")
    a("s_mov_b32 exec_lo, 0xff00ff00"); a("s_mov_b32 exec_hi, 0xff00ff00")
    a("v_mov_b32 v34, s18"); a("v_mov_b32 v35, s19")
    a("s_mov_b64 exec, -1")
    a("v_add_co_u32 v36, vcc, v34, v40"); a("v_addc_co_u32 v37, vcc, 0, v35, vcc")
    for t in range(3):
        a.vmem(f"global_load_dwordx4 {vr(84+4*t)}, v[36:37], off offset:{(t-1)*3456} {pol}", f"gu{t}", "gu")
    a("v_add_co_u32 v36, vcc, 6912, v36"); a("v_addc_co_u32 v37, vcc, 0, v37, vcc")
    a.vmem(f"global_load_dwordx4 {vr(96)}, v[36:37], off {pol}", "gu3", "gu")
    a("v_add_co_u32 v38, vcc, v34, v41"); a("v_addc_co_u32 v39, vcc, 0, v35, vcc")
    a.vmem(f"global_load_dwordx4 {vr(100)}, v[38:39], off {pol}", "gu4", "gu")
    a("L_nogu1:")
    a.vmem("global_load_dwordx2 v[16:17], v46, s[4:5]", "x0")
    a.vmem("global_load_ushort v18, v47, s[4:5] offset:32", "x1")
    stream = [("K", i) for i in range(qp)] + [("q", 0)] + [("K", i) for i in range(qp, 32)] + [("V", i) for i in range(32)] + [("ml", 0)] + [("C", i) for i in range(8)]
    pos = [0]
    kfree = [0]
    def vreg(i): return vr(64+4*i) if i < 16 else ar(4*(i-16))
    qloads = [f"global_load_dwordx4 {vr(16+8*e+4*hf)}, v3, s[28:29] offset:{e*1024+hf*16} sc1" for e in range(2) for hf in range(2)]
    guloads = [f"global_load_dwordx4 {vr(48+8*gu+4*hf)}, v38, s[28:29] offset:{gu*256+hf*16} sc1" for gu in range(2) for hf in range(2)]
    mlload = "global_load_dwordx4 v[28:31], v44, s[28:29] sc1"
    def can_issue():
        if pos[0] >= len(stream): return False
        k, i = stream[pos[0]]
        if k == "V" and i >= 16 and kfree[0] <= i - 16: return False
        return True
    def issue(n=1):
        for _ in range(n):
            if not can_issue(): return
            k, i = stream[pos[0]]; pos[0] += 1
            if k == "K" or k == "V":
                if k == "K": a.vmem(f"buffer_load_dwordx4 {ar(4*i)}, v12, s[44:47], s3 offen {pol}", f"K{i}")
                else: a.vmem(f"buffer_load_dwordx4 {vreg(i)}, v13, s[48:51], s3 offen {pol}", f"V{i}")
                a("s_add_u32 s3, s3, 4096"); a("s_and_b32 s3, s3, 0x1ffff")
            elif k == "q":
                for t in qloads: a.vmem(t, "q")
                a("s_cmp_eq_u32 s64, 2"); a("s_cbranch_scc0 L_nogp")
                for t in guloads: a.vmem(t, "gup", "hc")
                a("L_nogp:")
            elif k == "ml": a.vmem(mlload, "ml")
            elif k == "C":
                a.vmem(f"buffer_load_dwordx4 {ar(64+4*i)}, v14, s[52:55], {'s66' if i < 4 else 's67'} offen offset:{(i%4)*1280} {pol}", f"C{i}")
    def ahead(item, d=None):
        tgt = stream.index(item) + (D if d is None else d)
        while pos[0] <= tgt and can_issue(): issue()
    issue(3)
    a("v_mul_u32_u24 v14, 10240, v1"); a("v_lshl_add_u32 v14, v2, 4, v14")
    a("s_mov_b32 s55, 0x20000"); a("s_mov_b32 s77, %d" % SPIN); a("s_mov_b32 s76, 0x%x" % (0xffffffff ^ TAGM))
    a("s_cmp_ge_u32 s33, 5"); a("s_cbranch_scc1 L_role1")
    a("s_mov_b32 s64, 0")
    a("s_mov_b64 s[52:53], s[12:13]"); a("s_mov_b32 s54, %d" % (4096*1280))
    a("s_lshl_b32 s66, s32, 2"); a("s_add_u32 s66, s66, s34"); a("s_mul_i32 s66, s66, %d" % (32*1280))
    a("s_mov_b32 s65, s33")
    a("s_branch L_role2")
    a("L_role1:")
    a("s_mov_b64 s[52:53], s[20:21]"); a("s_mov_b32 s54, 0"); a("s_mov_b32 s64, 3")
    a("s_mov_b32 s65, 0"); a("s_mov_b32 s66, 0")
    a("s_cmp_ge_u32 s32, 27"); a("s_cbranch_scc1 L_role2")
    a("s_mov_b32 s64, 2")
    a("s_sub_u32 s78, s33, 5"); a("s_lshl_b32 s78, s78, 2"); a("s_add_u32 s78, s78, s34")
    a("s_cmp_ge_u32 s78, 10"); a("s_cbranch_scc1 L_role2")
    a("s_lshr_b32 s65, s78, 1")
    a("s_lshl_b32 s66, s32, 1"); a("s_and_b32 s79, s78, 1"); a("s_add_u32 s66, s66, s79"); a("s_mul_i32 s66, s66, %d" % (32*1280))
    a("s_mov_b32 s64, 1"); a("s_mov_b32 s54, %d" % (1728*1280))
    a("L_role2:")
    a("s_lshl_b32 s78, s65, 8"); a("s_add_u32 s66, s66, s78"); a("s_add_u32 s67, s66, 5120")
    a("s_mov_b64 s[56:57], s[24:25]"); a("s_mov_b32 s58, 2560"); a("s_mov_b32 s59, 0x20000")
    if touch:
        a("s_mov_b64 exec, 1")
        a("v_mov_b32 v50, 0")
        a.vmem(f"buffer_load_dword v51, v13, s[48:51], s3 offen", "t0")
        a.vmem(f"buffer_load_dword v51, v14, s[52:55], s66 offen", "t1")
        a.vmem(f"buffer_load_dword v51, v50, s[56:59], 0 offen", "t2")
        a.vmem(f"global_load_dword v51, v50, s[28:29]", "t3")
        a("s_mov_b64 exec, -1")
    issue(3)
    a("s_mov_b32 s31, 0")
    a("v_and_b32 v8, 3, v2"); a("v_lshlrev_b32 v8, 4, v8")
    a("v_mov_b32 v10, 0xffff"); a("v_mov_b32 v11, 0")
    a("v_lshlrev_b64 v[10:11], v8, v[10:11]")
    a("s_mov_b32 vcc_lo, 0x0f0f0f0f"); a("s_mov_b32 vcc_hi, 0x0f0f0f0f")
    a("v_cndmask_b32 v4, 0, v10, vcc"); a("v_cndmask_b32 v5, 0, v11, vcc")
    a("v_xor_b32 v6, v4, v10"); a("v_xor_b32 v7, v5, v11")
    a("v_lshrrev_b32 v15, 1, v1"); a("v_lshlrev_b32 v15, 9, v15"); a("v_lshl_add_u32 v15, v2, 5, v15")
    a("v_and_b32 v8, 1, v1"); a("v_lshl_add_u32 v15, v8, 4, v15")
    for t in range(4):
        a(f"s_mov_b32 s{68+2*t}, 0x{0x000f000f << (4*t):x}"); a(f"s_mov_b32 s{69+2*t}, 0x{0x000f000f << (4*t):x}")
    a("s_mov_b32 s78, 0x01000100"); a("s_mov_b32 s79, 0x03020302")
    a("v_lshlrev_b32 v48, 4, v0"); a("s_lshl_b32 s35, s34, 11"); a("v_add_u32 v49, s35, v48")
    a("s_lshl_b32 s35, s34, 10"); a("v_add_u32 v48, s35, v48")
    a("v_mov_b32 v52, 0"); a("v_mov_b32 v53, 0"); a("s_lshl_b32 s35, s34, 3"); a("s_add_u32 s35, s35, 8192"); a("v_mov_b32 v54, s35")
    a("ds_write_b64 v54, v[52:53]")
    while pos[0] < PRE: issue()
    a.wait("x1")
    stamp(2)
    a("v_perm_b32 v19, v16, v16, s78"); a("v_perm_b32 v20, v16, v16, s79")
    a("v_perm_b32 v21, v17, v17, s78"); a("v_perm_b32 v22, v17, v17, s79"); a("v_perm_b32 v23, v18, v18, s78")
    for t in range(5):
        A = 56 + 4*(t % 2)
        for q in range(4): a(f"v_and_b32 v{A+q}, v{19+t}, v{4+q}")
        c0 = "0" if t == 0 else vr(24); c1 = "0" if t == 0 else vr(28)
        a(f"v_mfma_f32_16x16x32_bf16 {vr(24)}, {vr(A)}, {vr(64+4*t)}, {c0}")
        a(f"v_mfma_f32_16x16x32_bf16 {vr(28)}, {vr(A)}, {vr(84+4*t)}, {c1}")
    issue()
    a(f"ds_write_b128 v49, {vr(24)}"); a(f"ds_write_b128 v49, {vr(28)} offset:1024")
    a("s_waitcnt lgkmcnt(0)"); a("s_barrier")
    for i in range(4):
        a(f"s_add_u32 s{36+i}, s{36+i}, 1"); a(f"s_and_b32 s{60+i}, s{36+i}, {TAGM}"); a(f"v_mov_b32 v{8+i}, s{60+i}")
    a("s_getreg_b32 s30, hwreg(HW_REG_XCC_ID, 0, 4)")
    a("s_lshl_b32 s35, s39, 4"); a("s_or_b32 s30, s30, s35"); a(f"s_and_b32 s30, s30, {TAGM}")
    a("s_cmp_ge_u32 s34, 2"); a("s_cbranch_scc1 L_noApub")
    for p in range(4): a(f"ds_read_b128 {vr(32+4*p)}, v48 offset:{p*2048}")
    a("s_lshl_b32 s35, s32, 3"); a("s_add_u32 s35, s35, s33"); a("s_lshl_b32 s35, s35, 10")
    a(f"s_mul_i32 s78, s34, {GP-QP}"); a("s_add_u32 s35, s35, s78"); a(f"s_add_u32 s35, s35, {QP}")
    a("s_cmp_eq_u32 s34, 0"); a("s_cselect_b32 s78, s30, s63"); a("v_mov_b32 v3, s78")
    a("s_waitcnt lgkmcnt(0)")
    for i in range(4):
        a(f"v_add_f32 v{32+i}, v{32+i}, v{36+i}"); a(f"v_add_f32 v{40+i}, v{40+i}, v{44+i}")
    for i in range(4): a(f"v_add_f32 v{32+i}, v{32+i}, v{40+i}")
    a("v_add_u32 v36, s35, v15")
    for i in range(4): a(f"v_and_or_b32 v{32+i}, v{32+i}, s76, v{8+i if i < 3 else 3}")
    a.vmem(f"global_store_dwordx4 v36, {vr(32)}, s[28:29]", "Apub", "Apub")
    a("L_noApub:")
    stamp(3)
    issue(2)
    a("s_lshl_b32 s35, s32, 13"); a("s_lshr_b32 s78, s33, 2"); a("s_lshl_b32 s78, s78, 9"); a("s_add_u32 s35, s35, s78"); a(f"s_add_u32 s35, s35, {QP}")
    a("v_lshrrev_b32 v3, 2, v2"); a("v_lshlrev_b32 v3, 11, v3"); a("v_and_b32 v16, 3, v2"); a("v_lshl_add_u32 v3, v16, 7, v3"); a("v_lshl_add_u32 v3, v1, 5, v3")
    a("v_add_u32 v3, s35, v3")
    a("s_lshl_b32 s35, s32, 13"); a("s_and_b32 s78, s34, 1"); a("s_lshl_b32 s78, s78, 7"); a("s_add_u32 s35, s35, s78"); a(f"s_add_u32 s35, s35, {GP}")
    a("v_and_b32 v38, 7, v2"); a("v_lshlrev_b32 v38, 10, v38"); a("v_lshrrev_b32 v16, 3, v2"); a("v_lshl_add_u32 v38, v16, 9, v38"); a("v_lshl_add_u32 v38, v1, 5, v38")
    a("v_add_u32 v38, s35, v38")
    assert pos[0] <= stream.index(("q", 0))
    tgt = stream.index(("q", 0)) + D - 3
    while pos[0] <= tgt and can_issue():
        if D < 14 and pos[0] - D >= 0 and stream[pos[0]-D][0] == "K": a.wait(f"K{stream[pos[0]-D][1]}")
        issue()
    a.wait("q")
    stamp(4)
    a("L_qchk:")
    tagcheck(16, 16, 37, "s30")
    a("s_cbranch_vccnz L_qslow")
    a("L_qok:")
    slow.extend(["L_qslow:", "s_bitcmp1_b32 s31, 1", "s_cbranch_scc1 L_qs1", "s_bitset1_b32 s31, 1",
                 "s_cmp_ge_u32 s34, 2", "s_cbranch_scc1 L_qs1", f"global_store_dwordx4 v36, {vr(32)}, s[28:29] sc1", "L_qs1:"])
    slow.extend([f"v_and_b32 v{19+4*i}, -16, v{19+4*i}" for i in range(4)])
    slow.extend(["v_or_b32 v37, v16, v17"] + [f"v_or3_b32 v37, v37, v{16+i}, v{17+i}" for i in range(2, 16, 2)])
    slow.extend([f"v_and_b32 v37, {TAGM}, v37", "v_cmp_ne_u32 vcc, 0, v37", "s_cbranch_vccnz L_qretry", "s_bitset1_b32 s31, 0", "s_branch L_qok"])
    retry("q", qloads)
    issue()
    a("s_cmp_eq_u32 s64, 2"); a("s_cbranch_scc0 L_noh")
    a("L_gchk:")
    tagcheck(48, 16, 37)
    a("s_cbranch_vccnz L_gretry")
    retry("g", guloads)
    for b0 in (48, 56):
        for k in range(4): a(f"v_add_f32_dpp v{b0+k}, v{b0+k}, v{b0+k} row_half_mirror row_mask:0xf bank_mask:0x5")
    for b0 in (48, 56):
        for k in range(4): a(f"v_add_f32_dpp v{b0+k}, v{b0+4+k}, v{b0+4+k} row_half_mirror row_mask:0xf bank_mask:0xa")
    for qpm in ("[1,0,3,2]", "[2,3,0,1]"):
        for b0 in (48, 56):
            for k in range(4): a(f"v_add_f32_dpp v{b0+k}, v{b0+k}, v{b0+k} quad_perm:{qpm} {DPPF}")
    rnd2(48, 49, 52); rnd2(50, 51, 53); rnd2(56, 57, 54); rnd2(58, 59, 55)
    c1 = -2*math.sqrt(2/math.pi)*LOG2E; c2 = c1*0.044715
    a(f"v_mov_b32 v60, 0x{f2u(c1):x}"); a(f"s_mov_b32 s35, 0x{f2u(c2):x}")
    for k in range(4): a(f"v_mul_f32 v{52+k}, v{48+k}, v{48+k}")
    for k in range(4): a(f"v_fma_f32 v{52+k}, v{52+k}, s35, v60")
    for k in range(4): a(f"v_mul_f32 v{52+k}, v{52+k}, v{48+k}")
    for k in range(4): a(f"v_exp_f32 v{52+k}, v{52+k}")
    for k in range(4): a(f"v_add_f32 v{52+k}, 1.0, v{52+k}")
    for k in range(4): a(f"v_rcp_f32 v{52+k}, v{52+k}")
    for k in range(4): a(f"v_mul_f32 v{48+k}, v{48+k}, v{52+k}")
    rnd2(48, 49, 52); rnd2(50, 51, 53)
    for k in range(4): a(f"v_mul_f32 v{48+k}, v{48+k}, v{56+k}")
    rnd2(48, 49, 52); rnd2(50, 51, 53)
    for k in range(4): a(f"v_or_b32 v{48+k}, v{48+k}, v{8+k}")
    a("s_lshl_b32 s35, s32, 1"); a("s_and_b32 s78, s34, 1"); a("s_add_u32 s35, s35, s78"); a("s_lshl_b32 s35, s35, 8"); a(f"s_add_u32 s35, s35, {HP}")
    a("v_and_b32 v52, 8, v2"); a("v_lshlrev_b32 v52, 4, v52"); a("v_and_b32 v53, 4, v2"); a("v_lshl_add_u32 v52, v53, 2, v52"); a("v_lshl_add_u32 v52, v1, 5, v52")
    a("v_add_u32 v52, s35, v52")
    a("s_mov_b32 exec_lo, 0x11111111"); a("s_mov_b32 exec_hi, 0x11111111")
    pub("hpub", "global_store_dwordx4 v52, v[48:51], s[28:29]", "hc")
    a("s_mov_b64 exec, -1")
    a("L_noh:")
    for i in range(8): a(f"v_add_f32 v{16+i}, v{16+i}, v{24+i}")
    for i in range(8): a(f"v_add_f32_dpp v{16+i}, v{16+i}, v{16+i} row_ror:8 {DPPF}")
    for i in range(8): a(f"v_add_f32_dpp v{16+i}, v{16+i}, v{16+i} row_ror:4 {DPPF}")
    for i in range(4): a(f"v_cvt_pk_bf16_f32 v{24+i}, v{16+2*i}, v{17+2*i}")
    for t in range(4):
        for i in range(4): a(f"v_cndmask_b32_e64 v{32+4*t+i}, 0, v{24+i}, s[{68+2*t}:{69+2*t}]")
    issue()
    def qk_mfma(p):
        L = []
        for t in range(4):
            for uu in range(2):
                u = 2*p + uu; d = 16 + 8*(p % 2) + 4*uu
                L.append(f"v_mfma_f32_16x16x32_bf16 {vr(d)}, {ar(16*u+4*t)}, {vr(32+4*t)}, {'0' if t == 0 else vr(d)}")
        return L
    def qk_red(p):
        L = []
        for jj in range(4):
            for uu in range(2):
                u = 2*p + uu; d = 16 + 8*(p % 2) + 4*uu
                if jj == 0: L.append(f"v_mov_b32_dpp v{48+u}, v{d} quad_perm:[0,0,0,0] {DPPF}")
                else: L.append(f"v_add_f32_dpp v{48+u}, v{d+jj}, v{48+u} quad_perm:[{jj},{jj},{jj},{jj}] {DPPF}")
        u = 48 + 2*p
        if mimic:
            L += [f"v_cvt_pk_bf16_f32 v56, v{u}, v{u+1}", f"v_lshlrev_b32 v{u}, 16, v56", f"v_and_b32 v{u+1}, 0xffff0000, v56",
                  f"v_mul_f32 v{u}, 0x{f2u(128**-0.5):x}, v{u}", f"v_mul_f32 v{u+1}, 0x{f2u(128**-0.5):x}, v{u+1}",
                  f"v_cvt_pk_bf16_f32 v56, v{u}, v{u+1}", f"v_lshlrev_b32 v{u}, 16, v56", f"v_and_b32 v{u+1}, 0xffff0000, v56"]
        return L
    for p in range(5):
        M = qk_mfma(p) if p < 4 else []
        R = qk_red(p-1) if p > 0 else []
        if p < 4 and 8*p+7 >= qp:
            ahead(("K", 8*p+7)); a.wait(f"K{8*p+7}")
        for m in M[:4]: a(m)
        M = M[4:]
        while M or R:
            for _ in range(4):
                if R: a(R.pop(0))
            if M: a(M.pop(0))
        kfree[0] = min(32, 8*(p+1))
        issue()
    sc = LOG2E if mimic else LOG2E * 128**-0.5
    a("v_max3_f32 v16, v48, v49, v50"); a("v_max3_f32 v17, v51, v52, v53"); a("v_max3_f32 v16, v16, v54, v55"); a("v_max_f32 v16, v16, v17")
    a(f"v_max_f32_dpp v16, v16, v16 row_ror:8 {DPPF}"); a(f"v_max_f32_dpp v16, v16, v16 row_ror:4 {DPPF}")
    a("v_max_f32_dpp v16, v16, v16 row_bcast:15 row_mask:0xa bank_mask:0xf")
    a("v_max_f32_dpp v16, v16, v16 row_bcast:31 row_mask:0xc bank_mask:0xf")
    a(f"v_mul_f32 v16, 0x{f2u(sc):x}, v16")
    a("v_readlane_b32 s35, v16, 63")
    a(f"v_mov_b32 v17, 0x{f2u(sc):x}")
    for u in range(8): a(f"v_fma_f32 v{48+u}, v{48+u}, v17, -s35")
    for u in range(8): a(f"v_exp_f32 v{48+u}, v{48+u}")
    a("v_add_f32 v18, v48, v49"); a("v_add_f32 v19, v50, v51"); a("v_add_f32 v20, v52, v53"); a("v_add_f32 v21, v54, v55")
    a("v_add_f32 v18, v18, v19"); a("v_add_f32 v20, v20, v21"); a("v_add_f32 v17, v18, v20")
    issue()
    for u in range(8): a(f"v_cvt_pk_bf16_f32 v{48+u}, v{48+u}, v{48+u}")
    a(f"v_add_f32_dpp v17, v17, v17 row_ror:8 {DPPF}"); a(f"v_add_f32_dpp v17, v17, v17 row_ror:4 {DPPF}")
    a("v_add_f32_dpp v17, v17, v17 row_bcast:15 row_mask:0xa bank_mask:0xf")
    a("v_add_f32_dpp v17, v17, v17 row_bcast:31 row_mask:0xc bank_mask:0xf")
    a("s_lshl_b32 s35, s34, 3"); a("s_add_u32 s35, s35, 8192"); a("v_mov_b32 v18, s35")
    a("s_mov_b32 exec_lo, 0"); a("s_mov_b32 exec_hi, 0x80000000")
    a("ds_write_b64 v18, v[16:17]")
    a("s_mov_b64 exec, -1")
    stamp(5)
    a("v_lshrrev_b32 v44, 3, v2"); a("v_lshlrev_b32 v44, 2, v44"); a("v_and_b32 v45, 3, v2"); a("v_add_u32 v44, v44, v45"); a("v_lshlrev_b32 v44, 11, v44")
    a("s_lshl_b32 s35, s32, 14"); a(f"s_add_u32 s35, s35, {OP}"); a("v_add_u32 v44, s35, v44")
    a("v_and_b32 v46, 4, v2"); a("v_lshlrev_b32 v46, 2, v46"); a("v_lshl_add_u32 v46, v1, 5, v46"); a("s_lshl_b32 s78, s34, 7"); a("v_add3_u32 v45, v46, s78, v44")
    a("v_add_u32 v44, 512, v44")
    a("s_cmp_eq_u32 s64, 1"); a("s_cbranch_scc0 L_noha")
    a("s_lshl_b32 s78, s32, 1"); a("s_and_b32 s79, s34, 1"); a("s_add_u32 s78, s78, s79"); a("s_lshl_b32 s78, s78, 8"); a(f"s_add_u32 s78, s78, {HP}")
    a("v_and_b32 v44, 8, v2"); a("v_lshlrev_b32 v44, 4, v44"); a("v_add3_u32 v44, v44, s78, v46")
    a("L_noha:")
    a("s_lshl_b32 s78, s33, 11"); a("s_add_u32 s35, s35, s78"); a("v_add_u32 v46, s35, v15")
    a("v_lshlrev_b32 v47, 4, v0"); a("s_lshl_b32 s78, s34, 10"); a("v_add_u32 v47, s78, v47")
    for i in range(32):
        u, t = i >> 2, i & 3
        A = 56 + 4*(i % 2)
        for q in range(4): a(f"v_and_b32_dpp v{A+q}, v{48+u}, v{4+q} row_newbcast:{4*t} {DPPF}")
        if i in sync: a("s_barrier")
        ahead(("V", i))
        if i == 31:
            while can_issue(): issue()
        if i == ML_AT:
            a("s_cmp_lg_u32 s34, 0"); a("s_cbranch_scc1 L_noml")
            a("v_mov_b32 v16, 8192")
            a("L_mlw:")
            a("ds_read_b128 v[20:23], v16"); a("ds_read_b128 v[24:27], v16 offset:16")
            a("s_sub_u32 s77, s77, 1"); a("s_cbranch_scc1 L_exit")
            a("s_waitcnt lgkmcnt(0)")
            a("v_min3_u32 v17, v23, v25, v27"); a("v_cmp_eq_u32 vcc, 0, v17"); a("s_cbranch_vccnz L_mlw")
            a("v_max3_f32 v16, v20, v22, v24"); a("v_max_f32 v16, v16, v26")
            for w in range(4): a(f"v_sub_f32 v{40+w}, v{20+2*w}, v16")
            for w in range(4): a(f"v_exp_f32 v{40+w}, v{40+w}")
            a("v_mul_f32 v18, v40, v21"); a("v_fmac_f32 v18, v41, v23"); a("v_fmac_f32 v18, v42, v25"); a("v_fmac_f32 v18, v43, v27")
            a("v_mov_b32 v17, s36"); a("v_mov_b32 v19, s37")
            a("s_mov_b64 exec, 1")
            pub("mlpub", "global_store_dwordx4 v46, v[16:19], s[28:29] offset:512", "lead")
            a("s_mov_b64 exec, -1")
            a("L_noml:")
        a.wait(f"V{i}")
        if i == 31: stamp(6)
        c = "0" if i == 0 else vr(32)
        a(f"v_mfma_f32_16x16x32_bf16 {vr(32)}, {vr(A)}, {vreg(i)}, {c}")
    a(f"ds_write_b128 v47, {vr(32)}")
    a("s_waitcnt lgkmcnt(0)"); a("s_barrier")
    a("s_cmp_lg_u32 s34, 0"); a("s_cbranch_scc1 L_noopub")
    for p in range(1, 4): a(f"ds_read_b128 {vr(12+4*p)}, v47 offset:{p*1024}")
    for k in range(4): a(f"v_mul_f32 v{32+k}, v40, v{32+k}")
    a("s_mov_b32 exec_hi, 0")
    a("s_waitcnt lgkmcnt(0)")
    for p in range(1, 4):
        for k in range(4): a(f"v_fmac_f32 v{32+k}, v{40+p}, v{12+4*p+k}")
    settag(32, 32)
    pub("opub", f"global_store_dwordx4 v46, {vr(32)}, s[28:29]", "lead")
    a("s_mov_b32 exec_hi, -1")
    a("L_noopub:")
    stamp(7)
    a("s_cmp_eq_u32 s64, 0"); a("s_cbranch_scc0 L_notwo")
    a.vmem("global_load_dwordx4 v[16:19], v45, s[28:29] sc1", "op", "wo")
    a.wait("ml", "wo")
    a("L_mchk:")
    a("v_xor_b32 v29, s36, v29"); a("v_xor_b32 v31, s37, v31"); a("v_or_b32 v29, v29, v31"); a("v_cmp_ne_u32 vcc, 0, v29")
    a("s_cbranch_vccnz L_mretry")
    retry("m", [mlload])
    a(f"v_max_f32_dpp v29, v28, v28 quad_perm:[1,0,3,2] {DPPF}"); a(f"v_max_f32_dpp v29, v29, v29 quad_perm:[2,3,0,1] {DPPF}")
    a("v_sub_f32 v28, v28, v29"); a("v_exp_f32 v28, v28"); a("v_mul_f32 v30, v30, v28")
    a(f"v_add_f32_dpp v30, v30, v30 quad_perm:[1,0,3,2] {DPPF}"); a(f"v_add_f32_dpp v30, v30, v30 quad_perm:[2,3,0,1] {DPPF}")
    a("v_rcp_f32 v30, v30"); a("v_mul_f32 v28, v28, v30")
    a("s_branch L_ochk")
    a("L_oloop:")
    a("global_load_dwordx4 v[16:19], v45, s[28:29] sc1")
    a("s_sub_u32 s77, s77, 1"); a("s_cbranch_scc1 L_exit")
    a("L_ochk:")
    a("s_waitcnt vmcnt(0)")
    tagcheck(16, 4, 20)
    a("s_cbranch_vccnz L_oloop")
    stamp(8)
    for k in range(4): a(f"v_mul_f32 v{16+k}, v28, v{16+k}")
    for qpm in ("[1,0,3,2]", "[2,3,0,1]"):
        for k in range(4): a(f"v_add_f32_dpp v{16+k}, v{16+k}, v{16+k} quad_perm:{qpm} {DPPF}")
    for k in range(4): a(f"v_cvt_pk_bf16_f32 v{36+k}, v{16+k}, v{16+k}")
    a("L_cstage:")
    for t in range(8):
        A = 56 + 4*(t % 2); hp = t >> 2; jj = t & 3
        for q in range(4):
            if (q >> 1) == hp: a(f"v_and_b32 v{A+q}, v{36+jj}, v{4+q}")
            else: a(f"v_and_b32_dpp v{A+q}, v{36+jj}, v{4+q} row_half_mirror {DPPF}")
        if t == 1: a("s_waitcnt vmcnt(4)")
        if t > 0:
            c = "0" if t == 1 else vr(32)
            a(f"v_mfma_f32_16x16x32_bf16 {vr(32)}, {vr(56+4*((t-1)%2))}, {ar(64+4*(t-1))}, {c}")
    a("s_lshl_b32 s35, s65, 6"); a("s_add_u32 s35, s35, s32")
    a(f"v_mfma_f32_16x16x32_bf16 {vr(32)}, {vr(60)}, {ar(92)}, {vr(32)}")
    a("s_lshl_b32 s78, s64, 5"); a("s_add_u32 s35, s35, s78"); a(f"s_mul_i32 s35, s35, {YS}"); a(f"s_add_u32 s35, s35, {YY}")
    a("v_add_u32 v3, s35, v15")
    a(f"ds_write_b128 v47, {vr(32)} offset:4096")
    a("s_waitcnt lgkmcnt(0)"); a("s_barrier")
    a("s_cmp_eq_u32 s64, 0"); a("s_cbranch_scc0 L_ffnred")
    a("s_cmp_lg_u32 s34, 0"); a("s_cbranch_scc1 L_end")
    for p in range(1, 4): a(f"ds_read_b128 {vr(12+4*p)}, v47 offset:{4096+p*1024}")
    a("s_waitcnt lgkmcnt(0)")
    for k in range(4): a(f"v_add_f32 v{32+k}, v{32+k}, v{16+k}")
    for k in range(4): a(f"v_add_f32 v{20+k}, v{20+k}, v{24+k}")
    for k in range(4): a(f"v_add_f32 v{32+k}, v{32+k}, v{20+k}")
    settag(32, 32)
    a(f"global_store_dwordx4 v3, {vr(32)}, s[28:29] sc1")
    a("s_branch L_end")
    a("L_notwo:")
    a("s_lshr_b32 s35, s32, 4"); a("s_mul_i32 s35, s35, 1280")
    a("v_lshlrev_b32 v24, 4, v0"); a("v_add_u32 v25, s35, v24")
    for k in range(8): a(f"v_mov_b32 v{72+k}, 0")
    a.vmem("global_load_dwordx4 v[64:67], v25, s[4:5]", "fx", "fin")
    a.vmem("global_load_dwordx4 v[68:71], v24, s[22:23]", "fx", "fin")
    a("s_mov_b64 exec, 0xffff")
    a.vmem("global_load_dwordx4 v[72:75], v25, s[4:5] offset:1024", "fx", "fin")
    a.vmem("global_load_dwordx4 v[76:79], v24, s[22:23] offset:1024", "fx", "fin")
    a("s_mov_b64 exec, -1")
    a("s_cmp_eq_u32 s64, 1"); a("s_cbranch_scc0 L_noffn")
    a.wait("ml", "fin")
    a("L_hchk:")
    tagcheck(28, 4, 20)
    a("s_cbranch_vccnz L_hretry")
    retry("h", [mlload])
    for k in range(4): a(f"v_cvt_pk_bf16_f32 v{36+k}, v{28+k}, v{28+k}")
    a("s_branch L_cstage")
    a("L_noffn:")
    a("s_cmp_eq_u32 s64, 2"); a("s_cbranch_scc0 L_final")
    a("s_barrier")
    a("s_branch L_final")
    a("L_ffnred:")
    a("s_bitcmp1_b32 s34, 0"); a("s_cbranch_scc1 L_final")
    a(f"ds_read_b128 {vr(20)}, v47 offset:{4096+1024}")
    a("s_waitcnt lgkmcnt(0)")
    for k in range(4): a(f"v_add_f32 v{32+k}, v{32+k}, v{20+k}")
    settag(32, 32)
    a(f"global_store_dwordx4 v3, {vr(32)}, s[28:29] sc1")
    a("L_final:")
    a("s_sub_u32 s35, s33, 5"); a("s_lshl_b32 s35, s35, 2"); a("s_add_u32 s35, s35, s34")
    a("s_cmp_eq_u32 s35, 0"); a("s_cbranch_scc1 L_end")
    a("s_cmp_eq_u32 s35, 4"); a("s_cbranch_scc1 L_end")
    a("s_cmp_gt_u32 s35, 4"); a("s_cselect_b32 s78, 2, 1"); a("s_sub_u32 s35, s35, s78")
    a("s_mul_i32 s65, s32, 10"); a("s_add_u32 s65, s65, s35")
    a("s_lshr_b32 s78, s32, 4")
    a("s_mul_i32 s79, s78, 160"); a("s_sub_u32 s79, s65, s79")
    a("s_lshr_b32 s35, s79, 5"); a(f"s_mul_i32 s35, s35, {64*YS}"); a("s_and_b32 s79, s79, 31"); a("s_lshl_b32 s79, s79, 4"); a("s_add_u32 s35, s35, s79")
    a("s_lshl_b32 s79, s78, 9"); a("s_add_u32 s35, s35, s79"); a(f"s_add_u32 s35, s35, {YY}")
    a("v_min_u32 v40, 58, v0"); a(f"v_mul_u32_u24 v40, {YS}, v40"); a("v_add_u32 v40, s35, v40")
    a("global_load_dwordx4 v[20:23], v40, s[28:29] sc1")
    a("s_lshl_b32 s66, s65, 3"); a("v_lshlrev_b32 v44, 1, v1")
    a("s_waitcnt vmcnt(2)" if False else "s_waitcnt vmcnt(1)")
    a("v_mov_b32 v36, 0")
    for xb, wb in ((64, 68), (72, 76)):
        for k in range(4):
            a(f"v_lshlrev_b32 v37, 16, v{xb+k}"); a(f"v_lshlrev_b32 v38, 16, v{wb+k}"); a("v_mul_f32 v37, v37, v38")
            a(f"v_and_b32 v38, 0xffff0000, v{xb+k}"); a(f"v_and_b32 v39, 0xffff0000, v{wb+k}"); a("v_mul_f32 v38, v38, v39")
            rnd2(37, 38, 39)
            a("v_add_f32 v36, v36, v37"); a("v_add_f32 v36, v36, v38")
    for m in ("quad_perm:[1,0,3,2]", "quad_perm:[2,3,0,1]", "row_half_mirror", "row_mirror"):
        a(f"v_add_f32_dpp v36, v36, v36 {m} {DPPF}")
    a("v_add_f32_dpp v36, v36, v36 row_bcast:15 row_mask:0xa bank_mask:0xf")
    a("v_add_f32_dpp v36, v36, v36 row_bcast:31 row_mask:0xc bank_mask:0xf")
    a("v_readlane_b32 s35, v36, 63")
    a("v_cvt_pk_bf16_f32 v36, s35, s35"); a("v_lshlrev_b32 v36, 16, v36")
    a(f"v_mul_f32 v36, 0x{f2u(-LOG2E):x}, v36"); a("v_exp_f32 v36, v36"); a("v_add_f32 v36, 1.0, v36"); a("v_rcp_f32 v36, v36")
    a("v_cvt_pk_bf16_f32 v36, v36, v36"); a("v_lshlrev_b32 v42, 16, v36")
    a("s_mov_b32 exec_lo, 0")
    a("v_sub_f32 v42, 1.0, v42"); a("v_cvt_pk_bf16_f32 v42, v42, v42"); a("v_lshlrev_b32 v42, 16, v42")
    a("s_mov_b32 exec_lo, -1")
    for k in range(4): a(f"v_mov_b32 v{16+k}, 0")
    a("s_mov_b32 exec_hi, 0x07ffffff")
    a("s_waitcnt vmcnt(0)")
    a("s_branch L_ychk")
    a("L_yloop:")
    if FSL:
        a("s_bcnt1_i32_b64 s35, exec"); a(f"s_cmp_gt_u32 s35, {FSL[0]}"); a("s_cbranch_scc0 L_ynosl"); a(f"s_sleep {FSL[1]}"); a("L_ynosl:")
    a("global_load_dwordx4 v[20:23], v40, s[28:29] sc1")
    a("s_sub_u32 s77, s77, 1"); a("s_cbranch_scc1 L_exit")
    a(f"s_waitcnt vmcnt({FP-1})")
    a("L_ychk:")
    for i in range(4): a(f"v_xor_b32 v{16+i}, s{60+i}, v{20+i}")
    a("v_or_b32 v24, v16, v17"); a("v_or3_b32 v24, v24, v18, v19"); a(f"v_and_b32 v24, {TAGM}, v24"); a("v_cmp_ne_u32 vcc, 0, v24")
    a("s_and_b64 exec, exec, vcc")
    a("s_cbranch_scc1 L_yloop")
    a("s_mov_b64 exec, -1")
    stamp(8)
    for k in range(4): a(f"v_mul_f32 v{16+k}, v42, v{16+k}")
    a("v_permlane32_swap_b32 v16, v18"); a("v_permlane32_swap_b32 v17, v19")
    a("v_add_f32 v16, v16, v18"); a("v_add_f32 v17, v17, v19")
    a("v_permlane16_swap_b32 v16, v17")
    a("v_add_f32 v16, v16, v17")
    for m in ("row_ror:8", "row_ror:4", "row_ror:2", "row_ror:1"): a(f"v_add_f32_dpp v16, v16, v16 {m} {DPPF}")
    a("v_cvt_pk_bf16_f32 v16, v16, v16")
    a("s_mov_b32 exec_lo, 0x00010001"); a("s_mov_b32 exec_hi, 0x00010001")
    a(f"buffer_store_short v16, v44, s[56:59], s66 offen {outpol}")
    a("s_cmp_lg_u32 s65, 0"); a("s_cbranch_scc1 L_end")
    a("s_mov_b64 exec, 1")
    for k in range(4): a(f"v_mov_b32 v{20+k}, s{36+k}")
    a("v_mov_b32 v24, 0")
    a(f"global_store_dwordx4 v24, v[20:23], s[28:29] {outpol}")
    a("L_end:")
    if diag:
        base, mul, k0, k1, msk, val = diag
        stamp(9)
        a("s_waitcnt lgkmcnt(0)")
        a(f"s_and_b32 s35, s2, {msk}"); a(f"s_cmp_eq_u32 s35, {val}"); a("s_cbranch_scc0 L_exit")
        a(f"s_sub_u32 s35, s{80+2*k1}, s{80+2*k0}"); a(f"s_mul_i32 s35, s35, {mul}"); a(f"s_add_u32 s35, s35, {base}")
        a("s_min_u32 s35, s35, 30000")
        a("L_diag:")
        a("s_memrealtime s[78:79]"); a("s_waitcnt lgkmcnt(0)"); a("s_sub_u32 s78, s78, s80"); a("s_cmp_lt_u32 s78, s35"); a("s_cbranch_scc1 L_diag")
    if stamps:
        stamp(9)
        a("s_mov_b64 exec, 1")
        a("s_lshl_b32 s3, s2, 2"); a("s_add_u32 s3, s3, s34"); a("s_lshl_b32 s3, s3, 6"); a("s_add_u32 s3, s3, 0x10000000")
        a("v_mov_b32 v3, s3")
        a("s_getreg_b32 s35, hwreg(HW_REG_XCC_ID)")
        a("s_waitcnt lgkmcnt(0)")
        a("s_getreg_b32 s78, hwreg(HW_REG_HW_ID)")
        vals = [f"s{80+2*k}" for k in range(10)] + ["s35", "s64", "s78", "s77", "s31", "s77"]
        for q in range(4):
            for k in range(4): a(f"v_mov_b32 v{48+4*q+k}, {vals[4*q+k]}")
            a(f"global_store_dwordx4 v3, {vr(48+4*q)}, s[28:29] offset:{16*q}")
    a("L_exit:")
    a("s_endpgm")
    for l in slow: a(l)
    if abl:
        L2 = []; phase = 0
        for l in a.L:
            if l.startswith("s_cbranch_vccnz") or l == "s_cbranch_scc1 L_yloop": continue
            if "noq" in abl and l in qloads: l = "buffer_load_dwordx4 v[16:19], v13, s[72:75], 0 offen"
            if l == "L_noApub:": phase = 1
            if l.startswith("ds_write_b128 v47"): phase = 2
            if l.startswith("global_store") and "v3, v[4" not in l and "v3, v[5" not in l and "v3, v[6" not in l:
                if "nostore" in abl or f"nost{phase}" in abl: continue
                if "plain" in abl: l = l.replace(" sc1", "")
                if "stnt" in abl: l = l.replace(" sc1", " nt")
                if "st01" in abl: l = l.replace(" sc1", " sc0 sc1")
                if "st1nt" in abl: l = l.replace(" sc1", " sc1 nt")
            if "nopf" in abl and l.startswith("v_min_u32 v1, L_last"): l = "v_mov_b32 v1, 0"
            if "nomfma" in abl and l.startswith("v_mfma"): continue
            if "novalu" in abl and ("_dpp" in l or l.startswith(("v_exp","v_cvt_pk","v_xor","v_or3","v_cndmask_b32_e64","v_fma","v_mul_f32","v_add_f32"))): continue
            if "noq" in abl and l.startswith("s_mov_b32 s74"): l = "s_mov_b32 s74, 0"
            if "noq" in abl and l.startswith("s_mov_b32 s75"): l = "s_mov_b32 s75, 0x20000"
            if "noq" in abl and l.startswith("s_mov_b32 s72"): l = "s_mov_b32 s72, s8"
            if "noq" in abl and l.startswith("s_mov_b32 s73"): l = "s_mov_b32 s73, s9"
            L2.append(l)
        a.L = L2
    body, nn = fix_hazards(a.L)
    out = [HEADER.rstrip("\n"), "; @launch grid=(256,1,1) block=(256,1,1) lds=8448",
           '.amdgcn_target "amdgcn-amd-amdhsa--gfx950"', ".text", f".globl {KN}", ".p2align 8", f".type {KN},@function"]
    out += [l if l.endswith(":") else "    " + l for l in body]
    out += ["L_last:", "    s_endpgm",
            '.section .rodata,"a"', ".p2align 6", f".amdhsa_kernel {KN}",
            f"  .amdhsa_next_free_vgpr {nfv}", "  .amdhsa_next_free_sgpr 102", "  .amdhsa_accum_offset 128",
            "  .amdhsa_group_segment_fixed_size 0", "  .amdhsa_kernarg_size 104", "  .amdhsa_user_sgpr_count 2",
            "  .amdhsa_user_sgpr_kernarg_segment_ptr 1", "  .amdhsa_system_sgpr_workgroup_id_x 1", ".end_amdhsa_kernel"]
    return "\n".join(out) + "\n", nn
if __name__ == "__main__":
    s, nn = gen()
    open("g3.s", "w").write(s)
    print("nops inserted", nn)
```

```python
import sys, struct, math
from asmlib import Asm, fix_hazards
KN = "gated_mix__sliding_block_cached__geglu_ffn__decode_kernel"
def f2u(x): return struct.unpack("<I", struct.pack("<f", x))[0]
LOG2E = 1.4426950408889634
TAGM = 0x3ff
QP, GP, OP, HP, GG, YY = 0x10000, 0x50000, 0x90000, 0x110000, 0x118000, 0x120000
LQ = 8256
YS = 1152
DPPF = "row_mask:0xf bank_mask:0xf"
HEADER = open("gated_mix__sliding_block_cached__geglu_ffn__decode.s.ref").read().split("; Override launch")[0]

def gen(D=16, qp=26, stamps=False, rot=(5,3), pol="nt", SPIN=200000, diag=None, nfv=256, touch=False, FSL=0, tailst=False, otouch=True, pf=1, DQ=12,
        ML_AT=6, outpol="", mimic=True, PRE=14, lite=False, abl=(), sync=(16,)):
    a = Asm()
    def stamp(k):
        if (stamps or diag) and not (lite and k not in (0, 6, 9)): a(f"s_memrealtime s[{80+2*k}:{81+2*k}]")
    def vr(b, n=4): return f"v[{b}:{b+n-1}]"
    def ar(b, n=4): return f"a[{b}:{b+n-1}]"
    def tagcheck(base, n, tmp, t3="s63"):
        for i in range(n): a(f"v_xor_b32 v{base+i}, {t3 if i%4 == 3 else 's%d' % (60+i%4)}, v{base+i}")
        a(f"v_or_b32 v{tmp}, v{base}, v{base+1}")
        for i in range(2, n, 2): a(f"v_or3_b32 v{tmp}, v{tmp}, v{base+i}, v{base+i+1}")
        a(f"v_and_b32 v{tmp}, {TAGM}, v{tmp}")
        a(f"v_cmp_ne_u32 vcc, 0, v{tmp}")
    def settag(dst, src):
        for i in range(4): a(f"v_and_or_b32 v{dst+i}, v{src+i}, s76, v{8+i}")
    def rnd2(x, y, tmp):
        a(f"v_cvt_pk_bf16_f32 v{tmp}, v{x}, v{y}")
        a(f"v_lshlrev_b32 v{x}, 16, v{tmp}")
        a(f"v_and_b32 v{y}, 0xffff0000, v{tmp}")
    slow = []
    def pub(name, text, role, ex=None):
        a.vmem(text, name, role)
        a("s_bitcmp1_b32 s31, 0"); a(f"s_cbranch_scc1 L_{name}far"); a(f"L_{name}near:")
        slow.extend([f"L_{name}far:", text + " sc1", f"s_branch L_{name}near"])
    def retry(name, loads):
        slow.append(f"L_{name}retry:"); slow.extend(loads)
        slow.extend(["s_sub_u32 s77, s77, 1", "s_waitcnt vmcnt(0)", "s_cbranch_scc1 L_exit", f"s_branch L_{name}chk"])

    a(f"{KN}:")
    stamp(0)
    a("s_load_dwordx16 s[4:19], s[0:1], 0")
    a("s_load_dwordx8 s[20:27], s[0:1], 64")
    a("s_load_dwordx2 s[28:29], s[0:1], 96")
    a("s_cmp_ge_u32 s2, 256")
    a("s_cbranch_scc1 L_exit")
    a("s_getpc_b64 s[30:31]")
    a("L_pc:")
    if pf == 1:
        a("v_lshrrev_b32 v1, 1, v0")
        a("v_lshlrev_b32 v1, 7, v1")
        a("v_min_u32 v1, L_last-L_pc, v1")
        a.vmem("global_load_dword v3, v1, s[30:31]", "pf")
    elif pf == 2:
        a("s_lshr_b32 s3, s2, 3"); a("s_lshl_b32 s3, s3, 9")
        a("v_lshrrev_b32 v1, 6, v0"); a("v_lshl_add_u32 v1, v1, 7, s3")
        a("v_min_u32 v1, L_last-L_pc, v1")
        a.vmem("global_load_dword v3, v1, s[30:31]", "pf")
    a("v_lshrrev_b32 v1, 6, v0")
    a("v_and_b32 v0, 63, v0")
    a("v_readfirstlane_b32 s34, v1")
    a("s_and_b32 s32, s2, 31")
    a("s_lshr_b32 s33, s2, 5")
    a("v_lshrrev_b32 v1, 4, v0")
    a("v_and_b32 v2, 15, v0")
    a("s_mul_i32 s35, s33, 80")
    a("s_mul_i32 s3, s34, 20")
    a("s_add_u32 s35, s35, s3")
    a("s_mov_b32 s42, %d" % (640*8192)); a("s_mov_b32 s43, 0x20000")
    a("s_lshl_b32 s3, s35, 13"); a("s_lshl_b32 s78, s32, 8"); a("s_add_u32 s3, s3, s78")
    a("v_lshlrev_b32 v13, 4, v2")
    a("v_add_u32 v33, s3, v13")
    a("v_lshl_add_u32 v32, v1, 15, v33")
    a("v_lshl_add_u32 v33, v1, 13, v33")
    a("v_lshrrev_b32 v44, 3, v2")
    a("v_mul_u32_u24 v45, 1280, v44")
    a("s_lshl_b32 s3, s35, 1")
    a("v_add_u32 v45, s3, v45")
    a("v_lshl_add_u32 v46, v1, 3, v45")
    a("v_lshl_add_u32 v47, v1, 1, v45")
    a("s_mul_i32 s3, s35, 3456"); a("s_lshl_b32 s78, s32, 7"); a("s_add_u32 s3, s3, s78")
    a("v_and_b32 v42, 0x70, v13")
    a("v_add_u32 v42, s3, v42")
    a("v_mul_u32_u24 v43, 3456, v1")
    a("v_lshl_add_u32 v40, v43, 2, v42")
    a("v_add_u32 v40, 3456, v40")
    a("v_add_u32 v41, v43, v42")
    a("v_add_u32 v41, %d, v41" % (16*3456))
    a("s_mov_b32 s46, 0x8000000"); a("s_mov_b32 s47, 0x20000")
    a("s_mov_b32 s50, 0x8000000"); a("s_mov_b32 s51, 0x20000")
    a("s_lshr_b32 s3, s33, 2"); a("s_lshl_b32 s3, s3, 5"); a("s_add_u32 s3, s3, s32"); a("s_lshl_b32 s3, s3, 21")
    a("s_and_b32 s78, s33, 3"); a("s_lshl_b32 s78, s78, 17"); a("s_add_u32 s3, s3, s78")
    a("s_lshl_b32 s78, s34, 10"); a("s_add_u32 s3, s3, s78"); a("s_add_u32 s3, s3, %d" % (6144*256))
    a("v_lshlrev_b32 v12, 6, v2"); a("v_lshl_add_u32 v12, v1, 4, v12"); a("v_add_u32 v12, s3, v12")
    a("v_lshl_add_u32 v13, v0, 4, s3")
    a(f"s_mul_i32 s3, s32, {rot[0]}"); a(f"s_mul_i32 s78, s33, {rot[1]}"); a("s_add_u32 s3, s3, s78")
    a("s_and_b32 s3, s3, 31"); a("s_lshl_b32 s3, s3, 12")
    a("s_mov_b32 s78, 8192"); a("s_mov_b32 s79, 16384"); a("s_mov_b32 s66, 24576"); a("s_mov_b32 s67, %d" % (16*8192))
    a("s_waitcnt lgkmcnt(0)")
    stamp(1)
    a("s_mov_b64 s[40:41], s[10:11]")
    for t, so in enumerate(["0", "s78", "s79", "s66"]):
        a.vmem(f"buffer_load_dwordx4 {vr(64+4*t)}, v32, s[40:43], {so} offen {pol}", f"wq{t}")
    a.vmem(f"buffer_load_dwordx4 {vr(80)}, v33, s[40:43], s67 offen {pol}", "wq4")
    a("s_load_dwordx4 s[36:39], s[28:29], 0")
    a("s_mov_b64 s[44:45], s[6:7]"); a("s_mov_b64 s[48:49], s[8:9]")
    a("s_cmp_ge_u32 s32, 27")
    a("s_cbranch_scc1 L_nogu1")
    a("v_mov_b32 v34, s16"); a("v_mov_b32 v35, s17")
    a("s_mov_b32 exec_lo, 0xff00ff00"); a("s_mov_b32 exec_hi, 0xff00ff00")
    a("v_mov_b32 v34, s18"); a("v_mov_b32 v35, s19")
    a("s_mov_b64 exec, -1")
    a("v_add_co_u32 v36, vcc, v34, v40"); a("v_addc_co_u32 v37, vcc, 0, v35, vcc")
    for t in range(3):
        a.vmem(f"global_load_dwordx4 {vr(84+4*t)}, v[36:37], off offset:{(t-1)*3456} {pol}", f"gu{t}", "gu")
    a("v_add_co_u32 v36, vcc, 6912, v36"); a("v_addc_co_u32 v37, vcc, 0, v37, vcc")
    a.vmem(f"global_load_dwordx4 {vr(96)}, v[36:37], off {pol}", "gu3", "gu")
    a("v_add_co_u32 v38, vcc, v34, v41"); a("v_addc_co_u32 v39, vcc, 0, v35, vcc")
    a.vmem(f"global_load_dwordx4 {vr(100)}, v[38:39], off {pol}", "gu4", "gu")
    a("L_nogu1:")
    a.vmem("global_load_dwordx2 v[16:17], v46, s[4:5]", "x0")
    a.vmem("global_load_ushort v18, v47, s[4:5] offset:32", "x1")
    stream = [("K", i) for i in range(qp)] + [("q", 0)] + [("K", i) for i in range(qp, 32)] + [("V", i) for i in range(32)] + [("ml", 0)] + [("C", i) for i in range(8)]
    pos = [0]
    kfree = [0]
    def vreg(i): return vr(64+4*i) if i < 16 else ar(4*(i-16))
    qloads = [f"global_load_dwordx4 {vr(16+4*e)}, v3, s[28:29] offset:{e*2048-4096} sc1" for e in range(4)]
    guloads = [f"global_load_dwordx4 {vr(48+8*gu+4*hf)}, v38, s[28:29] offset:{gu*256+hf*16} sc1" for gu in range(2) for hf in range(2)]
    mlload = "global_load_dwordx4 v[28:31], v44, s[28:29] sc1"
    def can_issue():
        if pos[0] >= len(stream): return False
        k, i = stream[pos[0]]
        if k == "V" and i >= 16 and kfree[0] <= i - 16: return False
        return True
    def issue(n=1):
        for _ in range(n):
            if not can_issue(): return
            k, i = stream[pos[0]]; pos[0] += 1
            if k == "K" or k == "V":
                if k == "K": a.vmem(f"buffer_load_dwordx4 {ar(4*i)}, v12, s[44:47], s3 offen {pol}", f"K{i}")
                else: a.vmem(f"buffer_load_dwordx4 {vreg(i)}, v13, s[48:51], s3 offen {pol}", f"V{i}")
                a("s_add_u32 s3, s3, 4096"); a("s_and_b32 s3, s3, 0x1ffff")
            elif k == "q":
                a("s_cmp_eq_u32 s34, 1"); a("s_cbranch_scc0 L_noqp")
                for t in qloads: a.vmem(t, "q", "qw")
                a("L_noqp:")
                a("s_cmp_eq_u32 s64, 2"); a("s_cbranch_scc0 L_nogp")
                for t in guloads: a.vmem(t, "gup", "hc")
                a("L_nogp:")
            elif k == "ml":
                if otouch: a.vmem("global_load_dword v28, v45, s[28:29] sc1", "ot")
                a.vmem(mlload, "ml")
            elif k == "C":
                a.vmem(f"buffer_load_dwordx4 {ar(64+4*i)}, v14, s[52:55], {'s66' if i < 4 else 's67'} offen offset:{(i%4)*1280} {pol}", f"C{i}")
    def ahead(item, d=None):
        tgt = stream.index(item) + (D if d is None else d)
        while pos[0] <= tgt and can_issue(): issue()
    issue(3)
    a("v_mul_u32_u24 v14, 10240, v1"); a("v_lshl_add_u32 v14, v2, 4, v14")
    a("s_mov_b32 s55, 0x20000"); a("s_mov_b32 s77, %d" % SPIN); a("s_mov_b32 s76, 0x%x" % (0xffffffff ^ TAGM))
    a("s_cmp_ge_u32 s33, 5"); a("s_cbranch_scc1 L_role1")
    a("s_mov_b32 s64, 0")
    a("s_mov_b64 s[52:53], s[12:13]"); a("s_mov_b32 s54, %d" % (4096*1280))
    a("s_lshl_b32 s66, s32, 2"); a("s_add_u32 s66, s66, s34"); a("s_mul_i32 s66, s66, %d" % (32*1280))
    a("s_mov_b32 s65, s33")
    a("s_branch L_role2")
    a("L_role1:")
    a("s_mov_b64 s[52:53], s[20:21]"); a("s_mov_b32 s54, 0"); a("s_mov_b32 s64, 3")
    a("s_mov_b32 s65, 0"); a("s_mov_b32 s66, 0")
    a("s_cmp_ge_u32 s32, 27"); a("s_cbranch_scc1 L_role2")
    a("s_mov_b32 s64, 2")
    a("s_sub_u32 s78, s33, 5"); a("s_lshl_b32 s78, s78, 2"); a("s_add_u32 s78, s78, s34")
    a("s_cmp_ge_u32 s78, 10"); a("s_cbranch_scc1 L_role2")
    a("s_lshr_b32 s65, s78, 1")
    a("s_lshl_b32 s66, s32, 1"); a("s_and_b32 s79, s78, 1"); a("s_add_u32 s66, s66, s79"); a("s_mul_i32 s66, s66, %d" % (32*1280))
    a("s_mov_b32 s64, 1"); a("s_mov_b32 s54, %d" % (1728*1280))
    a("L_role2:")
    a("s_lshl_b32 s78, s65, 8"); a("s_add_u32 s66, s66, s78"); a("s_add_u32 s67, s66, 5120")
    a("s_mov_b64 s[56:57], s[24:25]"); a("s_mov_b32 s58, 2560"); a("s_mov_b32 s59, 0x20000")
    if touch:
        a("s_mov_b64 exec, 1")
        a("v_mov_b32 v50, 0")
        a.vmem(f"buffer_load_dword v51, v13, s[48:51], s3 offen", "t0")
        a.vmem(f"buffer_load_dword v51, v14, s[52:55], s66 offen", "t1")
        a.vmem(f"buffer_load_dword v51, v50, s[56:59], 0 offen", "t2")
        a.vmem(f"global_load_dword v51, v50, s[28:29]", "t3")
        a("s_mov_b64 exec, -1")
    issue(3)
    a("s_mov_b32 s31, 0")
    a("v_and_b32 v8, 3, v2"); a("v_lshlrev_b32 v8, 4, v8")
    a("v_mov_b32 v10, 0xffff"); a("v_mov_b32 v11, 0")
    a("v_lshlrev_b64 v[10:11], v8, v[10:11]")
    a("s_mov_b32 vcc_lo, 0x0f0f0f0f"); a("s_mov_b32 vcc_hi, 0x0f0f0f0f")
    a("v_cndmask_b32 v4, 0, v10, vcc"); a("v_cndmask_b32 v5, 0, v11, vcc")
    a("v_xor_b32 v6, v4, v10"); a("v_xor_b32 v7, v5, v11")
    a("v_lshrrev_b32 v15, 1, v1"); a("v_lshlrev_b32 v15, 9, v15"); a("v_lshl_add_u32 v15, v2, 5, v15")
    a("v_and_b32 v8, 1, v1"); a("v_lshl_add_u32 v15, v8, 4, v15")
    for t in range(4):
        a(f"s_mov_b32 s{68+2*t}, 0x{0x000f000f << (4*t):x}"); a(f"s_mov_b32 s{69+2*t}, 0x{0x000f000f << (4*t):x}")
    a("s_mov_b32 s78, 0x01000100"); a("s_mov_b32 s79, 0x03020302")
    a("v_lshlrev_b32 v48, 4, v0"); a("s_lshl_b32 s35, s34, 11"); a("v_add_u32 v49, s35, v48")
    a("s_lshr_b32 s35, s34, 1"); a("s_lshl_b32 s35, s35, 10"); a("v_add_u32 v48, s35, v48")
    a("v_mov_b32 v52, 0"); a("v_mov_b32 v53, 0"); a("s_lshl_b32 s35, s34, 3"); a("s_add_u32 s35, s35, 8192"); a("v_mov_b32 v54, s35")
    a("ds_write_b64 v54, v[52:53]")
    while pos[0] < PRE: issue()
    a.wait("x1")
    stamp(2)
    a("v_perm_b32 v19, v16, v16, s78"); a("v_perm_b32 v20, v16, v16, s79")
    a("v_perm_b32 v21, v17, v17, s78"); a("v_perm_b32 v22, v17, v17, s79"); a("v_perm_b32 v23, v18, v18, s78")
    for t in range(5):
        A = 56 + 4*(t % 2)
        for q in range(4): a(f"v_and_b32 v{A+q}, v{19+t}, v{4+q}")
        c0 = "0" if t == 0 else vr(24); c1 = "0" if t == 0 else vr(28)
        a(f"v_mfma_f32_16x16x32_bf16 {vr(24)}, {vr(A)}, {vr(64+4*t)}, {c0}")
        a(f"v_mfma_f32_16x16x32_bf16 {vr(28)}, {vr(A)}, {vr(84+4*t)}, {c1}")
    issue()
    a(f"ds_write_b128 v49, {vr(24)}"); a(f"ds_write_b128 v49, {vr(28)} offset:1024")
    a("s_waitcnt lgkmcnt(0)"); a("s_barrier")
    for i in range(4):
        a(f"s_add_u32 s{36+i}, s{36+i}, 1"); a(f"s_and_b32 s{60+i}, s{36+i}, {TAGM}"); a(f"v_mov_b32 v{8+i}, s{60+i}")
    a("v_mov_b32 v36, v15")
    a("s_getreg_b32 s30, hwreg(HW_REG_XCC_ID, 0, 4)")
    a("s_lshl_b32 s35, s39, 4"); a("s_or_b32 s30, s30, s35"); a(f"s_and_b32 s30, s30, {TAGM}")
    a("s_bitcmp1_b32 s34, 0"); a("s_cbranch_scc0 L_noApub")
    for p in range(4): a(f"ds_read_b128 {vr(32+4*p)}, v48 offset:{p*2048}")
    a("s_lshl_b32 s35, s32, 3"); a("s_add_u32 s35, s35, s33"); a("s_lshl_b32 s35, s35, 10")
    a("s_lshr_b32 s78, s34, 1"); a(f"s_mul_i32 s78, s78, {GP-QP}"); a("s_add_u32 s35, s35, s78"); a(f"s_add_u32 s35, s35, {QP}")
    a("s_cmp_eq_u32 s34, 1"); a("s_cselect_b32 s78, s30, s63"); a("v_mov_b32 v3, s78")
    a("s_waitcnt lgkmcnt(0)")
    for i in range(4):
        a(f"v_add_f32 v{32+i}, v{32+i}, v{36+i}"); a(f"v_add_f32 v{40+i}, v{40+i}, v{44+i}")
    for i in range(4): a(f"v_add_f32 v{32+i}, v{32+i}, v{40+i}")
    a("v_add_u32 v36, s35, v15")
    for i in range(4): a(f"v_and_or_b32 v{32+i}, v{32+i}, s76, v{8+i if i < 3 else 3}")
    a.vmem(f"global_store_dwordx4 v36, {vr(32)}, s[28:29]", "Apub", "Apub")
    a("L_noApub:")
    stamp(3)
    issue(2)
    a("s_lshl_b32 s35, s32, 13"); a("s_lshr_b32 s78, s33, 2"); a("s_lshl_b32 s78, s78, 9"); a("s_add_u32 s35, s35, s78"); a(f"s_add_u32 s35, s35, {QP+4096}")
    a("v_lshrrev_b32 v16, 5, v0"); a("v_and_b32 v17, 31, v0"); a("v_lshlrev_b32 v3, 10, v16"); a("v_lshl_add_u32 v3, v17, 4, v3")
    a("v_add_u32 v3, s35, v3")
    a("v_lshlrev_b32 v39, 2, v16"); a("v_lshl_add_u32 v39, v17, 3, v39")
    a("v_and_b32 v40, 3, v2"); a("v_lshlrev_b32 v40, 6, v40"); a("v_lshl_add_u32 v40, v1, 4, v40")
    a("s_lshl_b32 s35, s32, 13"); a("s_and_b32 s78, s34, 1"); a("s_lshl_b32 s78, s78, 7"); a("s_add_u32 s35, s35, s78"); a(f"s_add_u32 s35, s35, {GP}")
    a("v_and_b32 v38, 7, v2"); a("v_lshlrev_b32 v38, 10, v38"); a("v_lshrrev_b32 v16, 3, v2"); a("v_lshl_add_u32 v38, v16, 9, v38"); a("v_lshl_add_u32 v38, v1, 5, v38")
    a("v_add_u32 v38, s35, v38")
    assert pos[0] <= stream.index(("q", 0))
    tgt = stream.index(("q", 0)) + DQ
    while pos[0] <= tgt and can_issue():
        if D < 14 and pos[0] - D >= 0 and stream[pos[0]-D][0] == "K": a.wait(f"K{stream[pos[0]-D][1]}")
        issue()
    a("s_cmp_eq_u32 s34, 1"); a("s_cbranch_scc0 L_noq")
    a.wait("q", "qw")
    a("L_qchk:")
    tagcheck(16, 16, 37, "s30")
    a("s_cbranch_vccnz L_qslow")
    a("L_qok:")
    slow.extend(["L_qslow:", "s_bitcmp1_b32 s31, 1", "s_cbranch_scc1 L_qs1", "s_bitset1_b32 s31, 1",
                 f"global_store_dwordx4 v36, {vr(32)}, s[28:29] sc1", "L_qs1:"])
    slow.extend([f"v_and_b32 v{19+4*i}, -16, v{19+4*i}" for i in range(4)])
    slow.extend(["v_or_b32 v37, v16, v17"] + [f"v_or3_b32 v37, v37, v{16+i}, v{17+i}" for i in range(2, 16, 2)])
    slow.extend([f"v_and_b32 v37, {TAGM}, v37", "v_cmp_ne_u32 vcc, 0, v37", "s_cbranch_vccnz L_qretry", "s_bitset1_b32 s31, 0", "s_branch L_qok"])
    retry("q", qloads)
    for i in range(8): a(f"v_add_f32 v{16+i}, v{16+i}, v{24+i}")
    for i in range(4): a(f"v_add_f32 v{16+i}, v{16+i}, v{20+i}")
    a("v_mov_b32 v20, s31"); a(f"v_mov_b32 v21, {LQ+256}")
    a("v_permlane32_swap_b32 v16, v18"); a("v_permlane32_swap_b32 v17, v19")
    a("v_add_f32 v16, v16, v18"); a("v_add_f32 v17, v17, v19")
    a("v_cvt_pk_bf16_f32 v16, v16, v17")
    a("ds_write_b32 v21, v20")
    a(f"ds_write_b32 v39, v16 offset:{LQ}")
    a("s_waitcnt lgkmcnt(0)")
    a("L_noq:")
    a("s_barrier")
    stamp(4)
    a(f"v_mov_b32 v21, {LQ+256}")
    a(f"ds_read_b128 v[24:27], v40 offset:{LQ}")
    a("ds_read_b32 v20, v21")
    issue()
    a("s_waitcnt lgkmcnt(0)")
    a("v_readfirstlane_b32 s31, v20")
    a("s_bitcmp1_b32 s31, 0"); a("s_cbranch_scc1 L_gufar"); a("L_gunear:")
    slow.extend(["L_gufar:", "s_cmp_eq_u32 s34, 3", "s_cbranch_scc0 L_gunear", f"global_store_dwordx4 v36, {vr(32)}, s[28:29] sc1", "s_branch L_gunear"])
    a("s_cmp_eq_u32 s64, 2"); a("s_cbranch_scc0 L_noh")
    a.wait("gup", "hc")
    a("L_gchk:")
    tagcheck(48, 16, 37)
    a("s_cbranch_vccnz L_gretry")
    retry("g", guloads)
    for b0 in (48, 56):
        for k in range(4): a(f"v_add_f32_dpp v{b0+k}, v{b0+k}, v{b0+k} row_half_mirror row_mask:0xf bank_mask:0x5")
    for b0 in (48, 56):
        for k in range(4): a(f"v_add_f32_dpp v{b0+k}, v{b0+4+k}, v{b0+4+k} row_half_mirror row_mask:0xf bank_mask:0xa")
    for qpm in ("[1,0,3,2]", "[2,3,0,1]"):
        for b0 in (48, 56):
            for k in range(4): a(f"v_add_f32_dpp v{b0+k}, v{b0+k}, v{b0+k} quad_perm:{qpm} {DPPF}")
    rnd2(48, 49, 52); rnd2(50, 51, 53); rnd2(56, 57, 54); rnd2(58, 59, 55)
    c1 = -2*math.sqrt(2/math.pi)*LOG2E; c2 = c1*0.044715
    a(f"v_mov_b32 v60, 0x{f2u(c1):x}"); a(f"s_mov_b32 s35, 0x{f2u(c2):x}")
    for k in range(4): a(f"v_mul_f32 v{52+k}, v{48+k}, v{48+k}")
    for k in range(4): a(f"v_fma_f32 v{52+k}, v{52+k}, s35, v60")
    for k in range(4): a(f"v_mul_f32 v{52+k}, v{52+k}, v{48+k}")
    for k in range(4): a(f"v_exp_f32 v{52+k}, v{52+k}")
    for k in range(4): a(f"v_add_f32 v{52+k}, 1.0, v{52+k}")
    for k in range(4): a(f"v_rcp_f32 v{52+k}, v{52+k}")
    for k in range(4): a(f"v_mul_f32 v{48+k}, v{48+k}, v{52+k}")
    rnd2(48, 49, 52); rnd2(50, 51, 53)
    for k in range(4): a(f"v_mul_f32 v{48+k}, v{48+k}, v{56+k}")
    rnd2(48, 49, 52); rnd2(50, 51, 53)
    for k in range(4): a(f"v_or_b32 v{48+k}, v{48+k}, v{8+k}")
    a("s_lshl_b32 s35, s32, 1"); a("s_and_b32 s78, s34, 1"); a("s_add_u32 s35, s35, s78"); a("s_lshl_b32 s35, s35, 8"); a(f"s_add_u32 s35, s35, {HP}")
    a("v_and_b32 v52, 8, v2"); a("v_lshlrev_b32 v52, 4, v52"); a("v_and_b32 v53, 4, v2"); a("v_lshl_add_u32 v52, v53, 2, v52"); a("v_lshl_add_u32 v52, v1, 5, v52")
    a("v_add_u32 v52, s35, v52")
    a("s_mov_b32 exec_lo, 0x11111111"); a("s_mov_b32 exec_hi, 0x11111111")
    pub("hpub", "global_store_dwordx4 v52, v[48:51], s[28:29]", "hc")
    a("s_mov_b64 exec, -1")
    a("L_noh:")
    for t in range(4):
        for i in range(4): a(f"v_cndmask_b32_e64 v{32+4*t+i}, 0, v{24+i}, s[{68+2*t}:{69+2*t}]")
    issue()
    def qk_mfma(p):
        L = []
        for t in range(4):
            for uu in range(2):
                u = 2*p + uu; d = 16 + 8*(p % 2) + 4*uu
                L.append(f"v_mfma_f32_16x16x32_bf16 {vr(d)}, {ar(16*u+4*t)}, {vr(32+4*t)}, {'0' if t == 0 else vr(d)}")
        return L
    def qk_red(p):
        L = []
        for jj in range(4):
            for uu in range(2):
                u = 2*p + uu; d = 16 + 8*(p % 2) + 4*uu
                if jj == 0: L.append(f"v_mov_b32_dpp v{48+u}, v{d} quad_perm:[0,0,0,0] {DPPF}")
                else: L.append(f"v_add_f32_dpp v{48+u}, v{d+jj}, v{48+u} quad_perm:[{jj},{jj},{jj},{jj}] {DPPF}")
        u = 48 + 2*p
        if mimic:
            L += [f"v_cvt_pk_bf16_f32 v56, v{u}, v{u+1}", f"v_lshlrev_b32 v{u}, 16, v56", f"v_and_b32 v{u+1}, 0xffff0000, v56",
                  f"v_mul_f32 v{u}, 0x{f2u(128**-0.5):x}, v{u}", f"v_mul_f32 v{u+1}, 0x{f2u(128**-0.5):x}, v{u+1}",
                  f"v_cvt_pk_bf16_f32 v56, v{u}, v{u+1}", f"v_lshlrev_b32 v{u}, 16, v56", f"v_and_b32 v{u+1}, 0xffff0000, v56"]
        return L
    for p in range(5):
        M = qk_mfma(p) if p < 4 else []
        R = qk_red(p-1) if p > 0 else []
        if p < 4:
            ahead(("K", 8*p+7)); a.wait(f"K{8*p+7}")
        for m in M[:4]: a(m)
        M = M[4:]
        while M or R:
            for _ in range(4):
                if R: a(R.pop(0))
            if M: a(M.pop(0))
        kfree[0] = min(32, 8*(p+1))
        issue()
    sc = LOG2E if mimic else LOG2E * 128**-0.5
    a("v_max3_f32 v16, v48, v49, v50"); a("v_max3_f32 v17, v51, v52, v53"); a("v_max3_f32 v16, v16, v54, v55"); a("v_max_f32 v16, v16, v17")
    a(f"v_max_f32_dpp v16, v16, v16 row_ror:8 {DPPF}"); a(f"v_max_f32_dpp v16, v16, v16 row_ror:4 {DPPF}")
    a("v_max_f32_dpp v16, v16, v16 row_bcast:15 row_mask:0xa bank_mask:0xf")
    a("v_max_f32_dpp v16, v16, v16 row_bcast:31 row_mask:0xc bank_mask:0xf")
    a(f"v_mul_f32 v16, 0x{f2u(sc):x}, v16")
    a("v_readlane_b32 s35, v16, 63")
    a(f"v_mov_b32 v17, 0x{f2u(sc):x}")
    for u in range(8): a(f"v_fma_f32 v{48+u}, v{48+u}, v17, -s35")
    for u in range(8): a(f"v_exp_f32 v{48+u}, v{48+u}")
    a("v_add_f32 v18, v48, v49"); a("v_add_f32 v19, v50, v51"); a("v_add_f32 v20, v52, v53"); a("v_add_f32 v21, v54, v55")
    a("v_add_f32 v18, v18, v19"); a("v_add_f32 v20, v20, v21"); a("v_add_f32 v17, v18, v20")
    issue()
    for u in range(8): a(f"v_cvt_pk_bf16_f32 v{48+u}, v{48+u}, v{48+u}")
    a(f"v_add_f32_dpp v17, v17, v17 row_ror:8 {DPPF}"); a(f"v_add_f32_dpp v17, v17, v17 row_ror:4 {DPPF}")
    a("v_add_f32_dpp v17, v17, v17 row_bcast:15 row_mask:0xa bank_mask:0xf")
    a("v_add_f32_dpp v17, v17, v17 row_bcast:31 row_mask:0xc bank_mask:0xf")
    a("s_lshl_b32 s35, s34, 3"); a("s_add_u32 s35, s35, 8192"); a("v_mov_b32 v18, s35")
    a("s_mov_b32 exec_lo, 0"); a("s_mov_b32 exec_hi, 0x80000000")
    a("ds_write_b64 v18, v[16:17]")
    a("s_mov_b64 exec, -1")
    stamp(5)
    a("v_lshrrev_b32 v44, 3, v2"); a("v_lshlrev_b32 v44, 2, v44"); a("v_and_b32 v45, 3, v2"); a("v_add_u32 v44, v44, v45"); a("v_lshlrev_b32 v44, 11, v44")
    a("s_lshl_b32 s35, s32, 14"); a(f"s_add_u32 s35, s35, {OP}"); a("v_add_u32 v44, s35, v44")
    a("v_and_b32 v46, 4, v2"); a("v_lshlrev_b32 v46, 2, v46"); a("v_lshl_add_u32 v46, v1, 5, v46"); a("s_lshl_b32 s78, s34, 7"); a("v_add3_u32 v45, v46, s78, v44")
    a("v_add_u32 v44, 512, v44")
    a("s_cmp_eq_u32 s64, 1"); a("s_cbranch_scc0 L_noha")
    a("s_lshl_b32 s78, s32, 1"); a("s_and_b32 s79, s34, 1"); a("s_add_u32 s78, s78, s79"); a("s_lshl_b32 s78, s78, 8"); a(f"s_add_u32 s78, s78, {HP}")
    a("v_and_b32 v44, 8, v2"); a("v_lshlrev_b32 v44, 4, v44"); a("v_add3_u32 v44, v44, s78, v46")
    a("L_noha:")
    a("s_lshl_b32 s78, s33, 11"); a("s_add_u32 s35, s35, s78"); a("v_add_u32 v46, s35, v15")
    a("v_lshlrev_b32 v47, 4, v0"); a("s_lshl_b32 s78, s34, 10"); a("v_add_u32 v47, s78, v47")
    for i in range(32):
        u, t = i >> 2, i & 3
        A = 56 + 4*(i % 2)
        for q in range(4): a(f"v_and_b32_dpp v{A+q}, v{48+u}, v{4+q} row_newbcast:{4*t} {DPPF}")
        if i in sync: a("s_barrier")
        ahead(("V", i))
        if i == 31:
            while can_issue(): issue()
        if i == ML_AT:
            a("s_cmp_lg_u32 s34, 0"); a("s_cbranch_scc1 L_noml")
            a("v_mov_b32 v16, 8192")
            a("L_mlw:")
            a("ds_read_b128 v[20:23], v16"); a("ds_read_b128 v[24:27], v16 offset:16")
            a("s_sub_u32 s77, s77, 1"); a("s_cbranch_scc1 L_exit")
            a("s_waitcnt lgkmcnt(0)")
            a("v_min3_u32 v17, v23, v25, v27"); a("v_cmp_eq_u32 vcc, 0, v17"); a("s_cbranch_vccnz L_mlw")
            a("v_max3_f32 v16, v20, v22, v24"); a("v_max_f32 v16, v16, v26")
            for w in range(4): a(f"v_sub_f32 v{40+w}, v{20+2*w}, v16")
            for w in range(4): a(f"v_exp_f32 v{40+w}, v{40+w}")
            a("v_mul_f32 v18, v40, v21"); a("v_fmac_f32 v18, v41, v23"); a("v_fmac_f32 v18, v42, v25"); a("v_fmac_f32 v18, v43, v27")
            a("v_mov_b32 v17, s36"); a("v_mov_b32 v19, s37")
            a("s_mov_b64 exec, 1")
            pub("mlpub", "global_store_dwordx4 v46, v[16:19], s[28:29] offset:512", "lead")
            a("s_mov_b64 exec, -1")
            a("L_noml:")
        a.wait(f"V{i}")
        if i == 31: stamp(6)
        c = "0" if i == 0 else vr(32)
        a(f"v_mfma_f32_16x16x32_bf16 {vr(32)}, {vr(A)}, {vreg(i)}, {c}")
    a(f"ds_write_b128 v47, {vr(32)}")
    a("s_waitcnt lgkmcnt(0)"); a("s_barrier")
    a("s_cmp_lg_u32 s34, 0"); a("s_cbranch_scc1 L_noopub")
    for p in range(1, 4): a(f"ds_read_b128 {vr(12+4*p)}, v47 offset:{p*1024}")
    for k in range(4): a(f"v_mul_f32 v{32+k}, v40, v{32+k}")
    a("s_mov_b32 exec_hi, 0")
    a("s_waitcnt lgkmcnt(0)")
    for p in range(1, 4):
        for k in range(4): a(f"v_fmac_f32 v{32+k}, v{40+p}, v{12+4*p+k}")
    settag(32, 32)
    pub("opub", f"global_store_dwordx4 v46, {vr(32)}, s[28:29]", "lead")
    a("s_mov_b32 exec_hi, -1")
    a("L_noopub:")
    stamp(7)
    a("s_cmp_eq_u32 s64, 0"); a("s_cbranch_scc0 L_notwo")
    a("s_barrier")
    a.vmem("global_load_dwordx4 v[16:19], v45, s[28:29] sc1", "op", "wo")
    a.wait("ml", "wo")
    a("L_mchk:")
    a("v_xor_b32 v29, s36, v29"); a("v_xor_b32 v31, s37, v31"); a("v_or_b32 v29, v29, v31"); a("v_cmp_ne_u32 vcc, 0, v29")
    a("s_cbranch_vccnz L_mretry")
    retry("m", [mlload])
    a(f"v_max_f32_dpp v29, v28, v28 quad_perm:[1,0,3,2] {DPPF}"); a(f"v_max_f32_dpp v29, v29, v29 quad_perm:[2,3,0,1] {DPPF}")
    a("v_sub_f32 v28, v28, v29"); a("v_exp_f32 v28, v28"); a("v_mul_f32 v30, v30, v28")
    a(f"v_add_f32_dpp v30, v30, v30 quad_perm:[1,0,3,2] {DPPF}"); a(f"v_add_f32_dpp v30, v30, v30 quad_perm:[2,3,0,1] {DPPF}")
    a("v_rcp_f32 v30, v30"); a("v_mul_f32 v28, v28, v30")
    if tailst:
        a("s_waitcnt vmcnt(1)"); stamp(1)
    a("s_branch L_ochk")
    a("L_oloop:")
    a("global_load_dwordx4 v[16:19], v45, s[28:29] sc1")
    a("s_sub_u32 s77, s77, 1"); a("s_cbranch_scc1 L_exit")
    a("L_ochk:")
    a("s_waitcnt vmcnt(0)")
    tagcheck(16, 4, 20)
    a("s_cbranch_vccnz L_oloop")
    stamp(8)
    for k in range(4): a(f"v_mul_f32 v{16+k}, v28, v{16+k}")
    for qpm in ("[1,0,3,2]", "[2,3,0,1]"):
        for k in range(4): a(f"v_add_f32_dpp v{16+k}, v{16+k}, v{16+k} quad_perm:{qpm} {DPPF}")
    for k in range(4): a(f"v_cvt_pk_bf16_f32 v{36+k}, v{16+k}, v{16+k}")
    a("L_cstage:")
    for t in range(8):
        A = 56 + 4*(t % 2); hp = t >> 2; jj = t & 3
        for q in range(4):
            if (q >> 1) == hp: a(f"v_and_b32 v{A+q}, v{36+jj}, v{4+q}")
            else: a(f"v_and_b32_dpp v{A+q}, v{36+jj}, v{4+q} row_half_mirror {DPPF}")
        if t == 1:
            a("s_waitcnt vmcnt(0)")
            if tailst: stamp(3)
        if t > 0:
            c = "0" if t == 1 else vr(32)
            a(f"v_mfma_f32_16x16x32_bf16 {vr(32)}, {vr(56+4*((t-1)%2))}, {ar(64+4*(t-1))}, {c}")
    a("s_lshl_b32 s35, s65, 6"); a("s_add_u32 s35, s35, s32")
    a(f"v_mfma_f32_16x16x32_bf16 {vr(32)}, {vr(60)}, {ar(92)}, {vr(32)}")
    a("s_lshl_b32 s78, s64, 5"); a("s_add_u32 s35, s35, s78"); a(f"s_mul_i32 s35, s35, {YS}"); a(f"s_add_u32 s35, s35, {YY}")
    a("v_add_u32 v3, s35, v15")
    a(f"ds_write_b128 v47, {vr(32)} offset:4096")
    a("s_waitcnt lgkmcnt(0)"); a("s_barrier")
    a("s_cmp_eq_u32 s64, 0"); a("s_cbranch_scc0 L_ffnred")
    a("s_cmp_lg_u32 s34, 0"); a("s_cbranch_scc1 L_final")
    for p in range(1, 4): a(f"ds_read_b128 {vr(12+4*p)}, v47 offset:{4096+p*1024}")
    a("s_waitcnt lgkmcnt(0)")
    for k in range(4): a(f"v_add_f32 v{32+k}, v{32+k}, v{16+k}")
    for k in range(4): a(f"v_add_f32 v{20+k}, v{20+k}, v{24+k}")
    for k in range(4): a(f"v_add_f32 v{32+k}, v{32+k}, v{20+k}")
    settag(32, 32)
    a(f"global_store_dwordx4 v3, {vr(32)}, s[28:29] sc1")
    a("s_branch L_end")
    a("L_notwo:")
    a("s_cmp_eq_u32 s64, 1"); a("s_cbranch_scc0 L_end")
    a.wait("ml")
    a("L_hchk:")
    tagcheck(28, 4, 20)
    a("s_cbranch_vccnz L_hretry")
    retry("h", [mlload])
    for k in range(4): a(f"v_cvt_pk_bf16_f32 v{36+k}, v{28+k}, v{28+k}")
    a("s_branch L_cstage")
    a("L_ffnred:")
    a("s_bitcmp1_b32 s34, 0"); a("s_cbranch_scc1 L_final")
    a(f"ds_read_b128 {vr(20)}, v47 offset:{4096+1024}")
    a("s_waitcnt lgkmcnt(0)")
    for k in range(4): a(f"v_add_f32 v{32+k}, v{32+k}, v{20+k}")
    settag(32, 32)
    a(f"global_store_dwordx4 v3, {vr(32)}, s[28:29] sc1")
    a("s_branch L_end")
    a("L_final:")
    a("s_and_b32 s35, s32, 6"); a("s_cbranch_scc1 L_end")
    if tailst: stamp(5)
    a("s_lshr_b32 s78, s32, 4"); a("s_mul_i32 s35, s78, 1280")
    a("v_lshlrev_b32 v24, 4, v0"); a("v_add_u32 v25, s35, v24")
    for k in range(8): a(f"v_mov_b32 v{72+k}, 0")
    a("global_load_dwordx4 v[64:67], v25, s[4:5]")
    a("global_load_dwordx4 v[68:71], v24, s[22:23]")
    a("s_mov_b64 exec, 0xffff")
    a("global_load_dwordx4 v[72:75], v25, s[4:5] offset:1024")
    a("global_load_dwordx4 v[76:79], v24, s[22:23] offset:1024")
    a("s_mov_b64 exec, -1")
    a("s_mul_i32 s35, s33, 3"); a("s_add_u32 s35, s35, s34"); a("s_sub_u32 s35, s35, 1")
    a("s_lshl_b32 s79, s33, 1"); a("s_lshr_b32 s66, s34, 1"); a("s_add_u32 s79, s79, s66"); a("s_add_u32 s79, s79, 5")
    a("s_cmp_ge_u32 s33, 5"); a("s_cselect_b32 s35, s79, s35")
    a("s_mul_i32 s79, s35, 52"); a("s_lshr_b32 s79, s79, 8")
    a("s_mul_i32 s66, s79, 5"); a("s_sub_u32 s35, s35, s66"); a("s_lshl_b32 s35, s35, 2"); a("s_add_u32 s35, s35, s79")
    a("s_lshr_b32 s79, s32, 2"); a("s_and_b32 s66, s32, 1"); a("s_add_u32 s79, s79, s66")
    a("s_mul_i32 s65, s79, 20"); a("s_add_u32 s65, s65, s35")
    a("s_mul_i32 s79, s78, 80"); a("s_sub_u32 s79, s65, s79")
    a("s_lshr_b32 s35, s79, 4"); a(f"s_mul_i32 s35, s35, {64*YS}"); a("s_and_b32 s79, s79, 15"); a("s_lshl_b32 s79, s79, 5"); a("s_add_u32 s35, s35, s79")
    a("s_lshl_b32 s79, s78, 9"); a("s_add_u32 s35, s35, s79"); a(f"s_add_u32 s35, s35, {YY}")
    a("v_and_b32 v44, 1, v0"); a("v_lshl_add_u32 v42, v44, 4, s35"); a("v_lshrrev_b32 v41, 1, v0")
    a(f"s_movk_i32 s79, {YS}")
    a("v_mad_u32_u24 v40, v41, s79, v42"); a("v_min_u32 v41, 26, v41"); a("v_add_u32 v41, 32, v41"); a("v_mad_u32_u24 v41, v41, s79, v42")
    a("v_lshl_add_u32 v44, v44, 2, v1"); a("v_lshlrev_b32 v44, 1, v44"); a("s_lshl_b32 s66, s65, 4")
    a("buffer_load_ushort v45, v44, s[56:59], s66 offen")
    a("s_waitcnt vmcnt(1)")
    a("v_mov_b32 v36, 0")
    for xb, wb in ((64, 68), (72, 76)):
        for k in range(4):
            a(f"v_lshlrev_b32 v37, 16, v{xb+k}"); a(f"v_lshlrev_b32 v38, 16, v{wb+k}"); a("v_mul_f32 v37, v37, v38")
            a(f"v_and_b32 v38, 0xffff0000, v{xb+k}"); a(f"v_and_b32 v39, 0xffff0000, v{wb+k}"); a("v_mul_f32 v38, v38, v39")
            rnd2(37, 38, 39)
            a("v_add_f32 v36, v36, v37"); a("v_add_f32 v36, v36, v38")
    for m in ("quad_perm:[1,0,3,2]", "quad_perm:[2,3,0,1]", "row_half_mirror", "row_mirror"):
        a(f"v_add_f32_dpp v36, v36, v36 {m} {DPPF}")
    a("v_add_f32_dpp v36, v36, v36 row_bcast:15 row_mask:0xa bank_mask:0xf")
    a("v_add_f32_dpp v36, v36, v36 row_bcast:31 row_mask:0xc bank_mask:0xf")
    a("v_readlane_b32 s35, v36, 63")
    a("v_cvt_pk_bf16_f32 v36, s35, s35"); a("v_lshlrev_b32 v36, 16, v36")
    a(f"v_mul_f32 v36, 0x{f2u(-LOG2E):x}, v36"); a("v_exp_f32 v36, v36"); a("v_add_f32 v36, 1.0, v36"); a("v_rcp_f32 v36, v36")
    a("v_cvt_pk_bf16_f32 v36, v36, v36"); a("v_lshlrev_b32 v42, 16, v36")
    a("v_sub_f32 v43, 1.0, v42"); a("v_cvt_pk_bf16_f32 v43, v43, v43"); a("v_lshlrev_b32 v43, 16, v43")
    a("v_cmp_gt_u32 vcc, 54, v0"); a("v_cndmask_b32 v43, 0, v43, vcc")
    if tailst: stamp(3)
    a("L_yloop:")
    if FSL:
        a("s_bcnt1_i32_b64 s35, exec"); a(f"s_cmp_gt_u32 s35, {FSL[0]}"); a("s_cbranch_scc0 L_ynosl"); a(f"s_sleep {FSL[1]}"); a("L_ynosl:")
    a("global_load_dwordx4 v[16:19], v40, s[28:29] sc1")
    a("global_load_dwordx4 v[20:23], v41, s[28:29] sc1")
    a("s_sub_u32 s77, s77, 1"); a("s_cbranch_scc1 L_exit")
    a("s_waitcnt vmcnt(0)")
    tagcheck(16, 8, 24)
    a("s_and_b64 exec, exec, vcc")
    a("s_cbranch_scc1 L_yloop")
    a("s_mov_b64 exec, -1")
    if tailst: stamp(2)
    for k in range(4): a(f"v_mul_f32 v{16+k}, v42, v{16+k}")
    for k in range(4): a(f"v_fmac_f32 v{16+k}, v43, v{20+k}")
    a("v_permlane32_swap_b32 v16, v18"); a("v_permlane32_swap_b32 v17, v19")
    a("v_add_f32 v16, v16, v18"); a("v_add_f32 v17, v17, v19")
    a("v_permlane16_swap_b32 v16, v17")
    a("v_add_f32 v16, v16, v17")
    for m in ("row_ror:8", "row_ror:4", "row_ror:2"): a(f"v_add_f32_dpp v16, v16, v16 {m} {DPPF}")
    a("v_cvt_pk_bf16_f32 v16, v16, v16")
    a("s_mov_b32 exec_lo, 0x00030003"); a("s_mov_b32 exec_hi, 0x00030003")
    a(f"buffer_store_short v16, v44, s[56:59], s66 offen {outpol}")
    if stamps: a("s_mov_b32 s64, 3")
    a("s_cmp_lg_u32 s65, 0"); a("s_cbranch_scc1 L_end")
    a("s_mov_b64 exec, 1")
    for k in range(4): a(f"v_mov_b32 v{28+k}, s{36+k}")
    a("v_mov_b32 v24, 0")
    a(f"global_store_dwordx4 v24, v[28:31], s[28:29] {outpol}")
    a("L_end:")
    if diag:
        base, mul, k0, k1, msk, val = diag
        stamp(9)
        a("s_waitcnt lgkmcnt(0)")
        a(f"s_and_b32 s35, s2, {msk}"); a(f"s_cmp_eq_u32 s35, {val}"); a("s_cbranch_scc0 L_exit")
        a(f"s_sub_u32 s35, s{80+2*k1}, s{80+2*k0}"); a(f"s_mul_i32 s35, s35, {mul}"); a(f"s_add_u32 s35, s35, {base}")
        a("s_min_u32 s35, s35, 30000")
        a("L_diag:")
        a("s_memrealtime s[78:79]"); a("s_waitcnt lgkmcnt(0)"); a("s_sub_u32 s78, s78, s80"); a("s_cmp_lt_u32 s78, s35"); a("s_cbranch_scc1 L_diag")
    if stamps:
        stamp(9)
        a("s_mov_b64 exec, 1")
        a("s_lshl_b32 s3, s2, 2"); a("s_add_u32 s3, s3, s34"); a("s_lshl_b32 s3, s3, 6"); a("s_add_u32 s3, s3, 0x10000000")
        a("v_mov_b32 v3, s3")
        a("s_getreg_b32 s35, hwreg(HW_REG_XCC_ID)")
        a("s_waitcnt lgkmcnt(0)")
        a("s_getreg_b32 s78, hwreg(HW_REG_HW_ID)")
        vals = [f"s{80+2*k}" for k in range(10)] + ["s35", "s64", "s78", "s77", "s31", "s77"]
        for q in range(4):
            for k in range(4): a(f"v_mov_b32 v{48+4*q+k}, {vals[4*q+k]}")
            a(f"global_store_dwordx4 v3, {vr(48+4*q)}, s[28:29] offset:{16*q}")
    a("L_exit:")
    a("s_endpgm")
    for l in slow: a(l)
    if abl:
        L2 = []; phase = 0
        for l in a.L:
            if "chk" not in abl and (l.startswith("s_cbranch_vccnz") or l == "s_cbranch_scc1 L_yloop"): continue
            if "noq" in abl and l in qloads: l = "buffer_load_dwordx4 v[16:19], v13, s[72:75], 0 offen"
            if l == "L_noApub:": phase = 1
            if l.startswith("ds_write_b128 v47"): phase = 3 if "offset" in l else 2
            if l.startswith("global_store") and "v3, v[4" not in l and "v3, v[5" not in l and "v3, v[6" not in l:
                if "nostore" in abl or f"nost{phase}" in abl: continue
                if "plain" in abl: l = l.replace(" sc1", "")
                if "stnt" in abl: l = l.replace(" sc1", " nt")
                if "st01" in abl: l = l.replace(" sc1", " sc0 sc1")
                if "st1nt" in abl: l = l.replace(" sc1", " sc1 nt")
            if "nopf" in abl and l.startswith("v_min_u32 v1, L_last"): l = "v_mov_b32 v1, 0"
            if "nomfma" in abl and l.startswith("v_mfma"): continue
            if "novalu" in abl and ("_dpp" in l or l.startswith(("v_exp","v_cvt_pk","v_xor","v_or3","v_cndmask_b32_e64","v_fma","v_mul_f32","v_add_f32"))): continue
            if "noq" in abl and l.startswith("s_mov_b32 s74"): l = "s_mov_b32 s74, 0"
            if "noq" in abl and l.startswith("s_mov_b32 s75"): l = "s_mov_b32 s75, 0x20000"
            if "noq" in abl and l.startswith("s_mov_b32 s72"): l = "s_mov_b32 s72, s8"
            if "noq" in abl and l.startswith("s_mov_b32 s73"): l = "s_mov_b32 s73, s9"
            L2.append(l)
        a.L = L2
    body, nn = fix_hazards(a.L)
    out = [HEADER.rstrip("\n"), "; @launch grid=(256,1,1) block=(256,1,1) lds=8704",
           '.amdgcn_target "amdgcn-amd-amdhsa--gfx950"', ".text", f".globl {KN}", ".p2align 8", f".type {KN},@function"]
    out += [l if l.endswith(":") else "    " + l for l in body]
    out += ["L_last:", "    s_endpgm",
            '.section .rodata,"a"', ".p2align 6", f".amdhsa_kernel {KN}",
            f"  .amdhsa_next_free_vgpr {nfv}", "  .amdhsa_next_free_sgpr 102", "  .amdhsa_accum_offset 128",
            "  .amdhsa_group_segment_fixed_size 0", "  .amdhsa_kernarg_size 104", "  .amdhsa_user_sgpr_count 2",
            "  .amdhsa_user_sgpr_kernarg_segment_ptr 1", "  .amdhsa_system_sgpr_workgroup_id_x 1", ".end_amdhsa_kernel"]
    return "\n".join(out) + "\n", nn
if __name__ == "__main__":
    s, nn = gen()
    open("g4.s", "w").write(s)
    print("nops inserted", nn)
```

```python
import sys, struct, math
from asmlib import Asm, fix_hazards
KN = "gated_mix__sliding_block_cached__geglu_ffn__decode_kernel"
def f2u(x): return struct.unpack("<I", struct.pack("<f", x))[0]
LOG2E = 1.4426950408889634
TAGM = 0x3ff
QP, GP, OP, HP, GG, YY = 0x10000, 0x50000, 0x90000, 0x110000, 0x118000, 0x120000
LQ = 8256
YS = 1152
DPPF = "row_mask:0xf bank_mask:0xf"
HEADER = open("gated_mix__sliding_block_cached__geglu_ffn__decode.s.ref").read().split("; Override launch")[0]

def gen(D=16, qp=28, stamps=False, rot=(5,3), pol="nt", SPIN=200000, diag=None, nfv=256, touch=False, FSL=0, tailst=False, otouch=True, pf=2, DQ=12, perm=0, NH=0, remap=((0,27),(8,28),(16,30),(24,31)), FX=0, HD=0, GE=True, KF=4, LG=0, pad=0, ool=True,  mlplain=True,
        ML_AT=6, outpol="", mimic=True, PRE=12, lite=False, abl=(), sync=(16,)):
    a = Asm()
    def stamp(k):
        if (stamps or diag) and not (lite and k not in (0, 6, 9)): a(f"s_memrealtime s[{80+2*k}:{81+2*k}]")
    def vr(b, n=4): return f"v[{b}:{b+n-1}]"
    def ar(b, n=4): return f"a[{b}:{b+n-1}]"
    def tagcheck(base, n, tmp, t3="s63"):
        for i in range(n): a(f"v_xor_b32 v{base+i}, {t3 if i%4 == 3 else 's%d' % (60+i%4)}, v{base+i}")
        a(f"v_or_b32 v{tmp}, v{base}, v{base+1}")
        for i in range(2, n, 2): a(f"v_or3_b32 v{tmp}, v{tmp}, v{base+i}, v{base+i+1}")
        a(f"v_and_b32 v{tmp}, {TAGM}, v{tmp}")
        a(f"v_cmp_ne_u32 vcc, 0, v{tmp}")
    def settag(dst, src):
        for i in range(4): a(f"v_and_or_b32 v{dst+i}, v{src+i}, s76, v{8+i}")
    def rnd2(x, y, tmp):
        a(f"v_cvt_pk_bf16_f32 v{tmp}, v{x}, v{y}")
        a(f"v_lshlrev_b32 v{x}, 16, v{tmp}")
        a(f"v_and_b32 v{y}, 0xffff0000, v{tmp}")
    slow = []
    def pub(name, text, role, ex=None):
        a.vmem(text, name, role)
        a("s_bitcmp1_b32 s31, 0"); a(f"s_cbranch_scc1 L_{name}far"); a(f"L_{name}near:")
        slow.extend([f"L_{name}far:", text + " sc1", f"s_branch L_{name}near"])
    def retry(name, loads):
        slow.append(f"L_{name}retry:"); slow.extend(loads)
        slow.extend(["s_sub_u32 s77, s77, 1", "s_waitcnt vmcnt(0)", "s_cbranch_scc1 L_exit", f"s_branch L_{name}chk"])

    a(f"{KN}:")
    stamp(0)
    a("s_load_dwordx2 s[40:41], s[0:1], 24")
    a("s_cmpk_ge_u32 s2, 0x100")
    a("s_cbranch_scc1 L_exit")
    if perm == 1:
        a("s_lshr_b32 s3, s2, 3"); a("s_and_b32 s2, s2, 7"); a("s_lshl_b32 s2, s2, 5"); a("s_or_b32 s2, s2, s3")
    if perm == 2:
        a("s_cmp_ge_u32 s2, 224"); a("s_cselect_b32 s3, 1, 0"); a("s_xor_b32 s2, s2, s3")
    a("v_lshrrev_b32 v1, 6, v0")
    if pf:
        a("s_getpc_b64 s[30:31]")
        a("L_pc:")
        a("s_lshr_b32 s3, s2, 3"); a("s_lshl_b32 s3, s3, 9")
        a("v_lshl_add_u32 v3, v1, 7, s3")
        a("v_min_u32 v3, L_last-L_pc-256, v3")
        a.vmem("global_load_dword v3, v3, s[30:31] offset:256", "pf")
    a("v_and_b32 v0, 63, v0")
    a("v_readfirstlane_b32 s34, v1")
    a("s_and_b32 s32, s2, 31")
    a("s_lshr_b32 s33, s2, 5")
    a("v_lshrrev_b32 v1, 4, v0")
    a("v_and_b32 v2, 15, v0")
    a("s_lshl_b32 s35, s33, 2"); a("s_add_u32 s35, s35, s34"); a("s_mulk_i32 s35, 20")
    a("s_mov_b32 s42, %d" % (640*8192)); a("s_mov_b32 s43, 0x20000")
    a("s_lshl_b32 s3, s35, 5"); a("s_add_u32 s3, s3, s32"); a("s_lshl_b32 s3, s3, 8")
    a("v_lshl_add_u32 v33, v2, 4, s3")
    a("v_lshl_add_u32 v32, v1, 15, v33")
    a("v_lshl_add_u32 v33, v1, 13, v33")
    a("s_movk_i32 s78, 8192"); a("s_movk_i32 s79, 16384"); a("s_movk_i32 s66, 24576")
    a("s_brev_b32 s46, 16"); a("s_mov_b32 s47, s43"); a("s_mov_b64 s[50:51], s[46:47]")
    a("s_lshr_b32 s3, s33, 2"); a("s_lshl_b32 s3, s3, 5"); a("s_add_u32 s3, s3, s32"); a("s_lshl_b32 s3, s3, 4")
    a("s_or_b32 s67, s33, 12"); a("s_or_b32 s3, s3, s67"); a(f"s_lshl_b32 s3, s3, {7-LG}"); a("s_add_u32 s3, s3, s34"); a(f"s_lshl_b32 s3, s3, {10+LG}")
    a("v_lshl_add_u32 v12, v2, 2, v1"); a("v_lshl_add_u32 v12, v12, 4, s3")
    a("v_lshl_add_u32 v13, v0, 4, s3")
    a(f"s_mul_i32 s3, s32, {rot[0]}"); a(f"s_mul_i32 s67, s33, {rot[1]}"); a("s_add_u32 s3, s3, s67")
    a(f"s_and_b32 s3, s3, {31 >> LG}"); a(f"s_lshl_b32 s3, s3, {12+LG}")
    a("s_waitcnt lgkmcnt(0)")
    stamp(1)
    a("s_load_dwordx16 s[4:19], s[0:1], 0")
    for t, so in enumerate(["0", "s78", "s79", "s66"]):
        a.vmem(f"buffer_load_dwordx4 {vr(64+4*t)}, v32, s[40:43], {so} offen {pol}", f"wq{t}")
    a.vmem(f"buffer_load_dwordx4 {vr(80)}, v33, s[40:43], s43 offen {pol}", "wq4")
    a("s_waitcnt lgkmcnt(0)")
    a("s_mov_b64 s[44:45], s[6:7]")
    stream = [("K", i) for i in range(qp)] + [("q", 0)] + [("K", i) for i in range(qp, 32)] + [("V", i) for i in range(32)] + [("ml", 0)] + [("C", i) for i in range(8-NH)]
    pos = [0]
    kfree = [0]
    def vreg(i): return vr(64+4*i) if i < 16 else ar(4*(i-16))
    qloads = [f"global_load_dwordx4 {vr(16+4*e)}, v3, s[28:29] offset:{e*2048-4096} sc1" for e in range(4)]
    guloads = [f"global_load_dwordx4 {vr(48+8*gu+4*e)}, v38, s[28:29] offset:{gu*256+e*1024} sc1" for gu in range(2) for e in range(2)]
    mlload = "global_load_dwordx4 v[28:31], v44, s[28:29] sc1"
    def cload(i): return f"buffer_load_dwordx4 {ar(64+4*i)}, v14, s[52:55], {'s66' if i < 4 else 's67'} offen offset:{(i%4)*1280} {pol}"
    def can_issue():
        if pos[0] >= len(stream): return False
        k, i = stream[pos[0]]
        if k == "V" and i >= 16 and kfree[0] <= i - 16: return False
        return True
    def issue(n=1):
        for _ in range(n):
            if not can_issue(): return
            k, i = stream[pos[0]]; pos[0] += 1
            if k == "K" or k == "V":
                io = (i & ((1 << LG) - 1)) * 1024
                if k == "K": a.vmem(f"buffer_load_dwordx4 {ar(4*i)}, v12, s[44:47], s3 offen offset:{io} {pol}", f"K{i}")
                else: a.vmem(f"buffer_load_dwordx4 {vreg(i)}, v13, s[48:51], s3 offen offset:{io} {pol}", f"V{i}")
                if (i + 1) % (1 << LG) == 0:
                    a(f"s_addk_i32 s3, {4096 << LG}"); a("s_bitset0_b32 s3, 17")
            elif k == "q":
                a("s_cmp_eq_u32 s34, 1"); a("s_cbranch_scc0 L_noqp")
                for t in qloads: a.vmem(t, "q", "qw")
                a("L_noqp:")
                a("s_cmp_eq_u32 s64, 2"); a("s_cbranch_scc0 L_nogp")
                for t in guloads: a.vmem(t, "gup", "hc")
                a("L_nogp:")
            elif k == "ml":
                if otouch: a.vmem("global_load_dword v28, v45, s[28:29] sc1", "ot")
                a.vmem(mlload.replace(" sc1", "") if mlplain else mlload, "ml")
            elif k == "C":
                a.vmem(cload(i), f"C{i}")
    def ahead(item, d=None):
        tgt = stream.index(item) + (D if d is None else d)
        while pos[0] <= tgt and can_issue(): issue()
    issue(KF)
    a("s_load_dwordx8 s[20:27], s[0:1], 64")
    a("s_load_dwordx2 s[28:29], s[0:1], 96")
    a("s_mov_b32 s14, s32")
    for x, y in remap:
        a(f"s_cmp_eq_u32 s32, {x}"); a(f"s_cselect_b32 s14, {y}, s14"); a(f"s_cmp_eq_u32 s32, {y}"); a(f"s_cselect_b32 s14, {x}, s14")
    a("s_cmp_ge_u32 s14, 27")
    a("s_cbranch_scc1 L_nogu1")
    a("s_movk_i32 s79, 3456")
    a("s_mul_i32 s66, s35, s79"); a("s_lshl_b32 s78, s14, 7"); a("s_add_u32 s66, s66, s78")
    a("s_add_u32 s16, s16, s66"); a("s_addc_u32 s17, s17, 0"); a("s_add_u32 s18, s18, s66"); a("s_addc_u32 s19, s19, 0")
    a("v_mov_b32 v34, s16"); a("v_mov_b32 v35, s17")
    a("s_mov_b32 exec_lo, 0xff00ff00"); a("s_mov_b32 exec_hi, exec_lo")
    a("v_mov_b32 v34, s18"); a("v_mov_b32 v35, s19")
    a("s_mov_b64 exec, -1")
    a("v_and_b32 v42, 7, v2"); a("v_lshlrev_b32 v42, 4, v42")
    a("v_lshl_add_u32 v40, v1, 2, 1"); a("v_mad_u32_u24 v40, v40, s79, v42")
    a("v_add_co_u32 v36, vcc, v34, v40"); a("v_add_u32 v41, 16, v1"); a("v_mad_u32_u24 v41, v41, s79, v42"); a("v_addc_co_u32 v37, vcc, 0, v35, vcc")
    for t in range(3):
        a.vmem(f"global_load_dwordx4 {vr(84+4*t)}, v[36:37], off offset:{(t-1)*3456} {pol}", f"gu{t}", "gu")
    a("v_add_co_u32 v36, vcc, 6912, v36"); a("v_addc_co_u32 v37, vcc, 0, v37, vcc")
    a.vmem(f"global_load_dwordx4 {vr(96)}, v[36:37], off {pol}", "gu3", "gu")
    a("v_add_co_u32 v38, vcc, v34, v41"); a("v_addc_co_u32 v39, vcc, 0, v35, vcc")
    a.vmem(f"global_load_dwordx4 {vr(100)}, v[38:39], off {pol}", "gu4", "gu")
    a("L_nogu1:")
    a("v_lshrrev_b32 v44, 3, v2")
    a("v_mul_u32_u24 v45, 1280, v44")
    a("s_lshl_b32 s66, s35, 1")
    a("v_add_u32 v45, s66, v45")
    a("v_lshl_add_u32 v46, v1, 3, v45")
    a("v_lshl_add_u32 v47, v1, 1, v45")
    a.vmem("global_load_dwordx2 v[16:17], v46, s[4:5]", "x0")
    a.vmem("global_load_ushort v18, v47, s[4:5] offset:32", "x1")
    a("s_mov_b64 s[48:49], s[8:9]")
    a("s_waitcnt lgkmcnt(0)")
    a("s_load_dwordx4 s[36:39], s[28:29], 0")
    issue(3)
    a("v_mul_u32_u24 v14, 10240, v1"); a("v_lshl_add_u32 v14, v2, 4, v14")
    a("s_mov_b32 s55, 0x20000"); a("s_mov_b32 s77, %d" % SPIN); a("s_mov_b32 s76, 0x%x" % (0xffffffff ^ TAGM))
    a("s_cmp_ge_u32 s33, 5"); a("s_cbranch_scc1 L_role1")
    a("s_mov_b32 s64, 0")
    a("s_mov_b64 s[52:53], s[12:13]"); a("s_mov_b32 s54, %d" % (4096*1280))
    a("s_lshl_b32 s66, s32, 2"); a("s_add_u32 s66, s66, s34"); a("s_mul_i32 s66, s66, %d" % (32*1280))
    a("s_mov_b32 s65, s33")
    a("s_branch L_role2")
    a("L_role1:")
    a("s_mov_b64 s[52:53], s[20:21]"); a("s_mov_b32 s54, 0"); a("s_mov_b32 s64, 3")
    a("s_mov_b32 s65, 0"); a("s_mov_b32 s66, 0")
    a("s_cmp_ge_u32 s14, 27"); a("s_cbranch_scc1 L_role2")
    a("s_mov_b32 s64, 2")
    a("s_sub_u32 s78, s33, 5"); a("s_lshl_b32 s78, s78, 2"); a("s_add_u32 s78, s78, s34")
    a("s_cmp_ge_u32 s78, 10"); a("s_cbranch_scc1 L_role2")
    a("s_lshr_b32 s65, s78, 1")
    a("s_lshl_b32 s66, s14, 1"); a("s_and_b32 s79, s78, 1"); a("s_add_u32 s66, s66, s79"); a("s_mul_i32 s66, s66, %d" % (32*1280))
    a("s_mov_b32 s64, 1"); a("s_mov_b32 s54, %d" % (1728*1280))
    a("L_role2:")
    a("s_lshl_b32 s78, s65, 8"); a("s_add_u32 s66, s66, s78"); a("s_add_u32 s67, s66, 5120")
    a("s_mov_b64 s[56:57], s[24:25]"); a("s_mov_b32 s58, 2560"); a("s_mov_b32 s59, 0x20000")
    a("s_sub_u32 s15, 7, s33"); a("s_mul_i32 s15, s15, 3"); a("s_add_u32 s15, s15, s34"); a("s_sub_u32 s15, s15, 1")
    a("s_cmp_eq_u32 s34, 0"); a("s_cselect_b32 s15, 63, s15")
    a("s_and_b32 s78, s32, 7"); a(f"s_cmp_eq_u32 s78, {FX}"); a("s_cselect_b32 s15, s15, 63")
    if touch:
        a("s_mov_b64 exec, 1")
        a("v_mov_b32 v50, 0")
        a.vmem(f"buffer_load_dword v51, v13, s[48:51], s3 offen", "t0")
        a.vmem(f"buffer_load_dword v51, v14, s[52:55], s66 offen", "t1")
        a.vmem(f"buffer_load_dword v51, v50, s[56:59], 0 offen", "t2")
        a.vmem(f"global_load_dword v51, v50, s[28:29]", "t3")
        a("s_mov_b64 exec, -1")
    issue(3)
    a("s_mov_b32 s31, 0")
    a("v_and_b32 v8, 3, v2"); a("v_lshlrev_b32 v8, 4, v8")
    a("v_mov_b32 v10, 0xffff"); a("v_mov_b32 v11, 0")
    a("v_lshlrev_b64 v[10:11], v8, v[10:11]")
    a("s_mov_b32 vcc_lo, 0x0f0f0f0f"); a("s_mov_b32 vcc_hi, 0x0f0f0f0f")
    a("v_cndmask_b32 v4, 0, v10, vcc"); a("v_cndmask_b32 v5, 0, v11, vcc")
    a("v_xor_b32 v6, v4, v10"); a("v_xor_b32 v7, v5, v11")
    a("v_lshrrev_b32 v15, 1, v1"); a("v_lshlrev_b32 v15, 9, v15"); a("v_lshl_add_u32 v15, v2, 5, v15")
    a("v_and_b32 v8, 1, v1"); a("v_lshl_add_u32 v15, v8, 4, v15")
    for t in range(4):
        a(f"s_mov_b32 s{68+2*t}, 0x{0x000f000f << (4*t):x}"); a(f"s_mov_b32 s{69+2*t}, 0x{0x000f000f << (4*t):x}")
    a("s_mov_b32 s78, 0x01000100"); a("s_mov_b32 s79, 0x03020302")
    a("v_lshlrev_b32 v48, 4, v0"); a("s_lshl_b32 s35, s34, 11"); a("v_add_u32 v49, s35, v48")
    a("s_lshr_b32 s35, s34, 1"); a("s_lshl_b32 s35, s35, 10"); a("v_add_u32 v48, s35, v48")
    a("v_mov_b32 v52, 0"); a("v_mov_b32 v53, 0"); a("s_lshl_b32 s35, s34, 3"); a("s_add_u32 s35, s35, 8192"); a("v_mov_b32 v54, s35")
    a("ds_write_b64 v54, v[52:53]")
    while pos[0] < PRE + KF: issue()
    a.wait("x1")
    stamp(2)
    a("v_perm_b32 v19, v16, v16, s78"); a("v_perm_b32 v20, v16, v16, s79")
    a("v_perm_b32 v21, v17, v17, s78"); a("v_perm_b32 v22, v17, v17, s79"); a("v_perm_b32 v23, v18, v18, s78")
    for t in range(5):
        A = 56 + 4*(t % 2)
        for q in range(4): a(f"v_and_b32 v{A+q}, v{19+t}, v{4+q}")
        c0 = "0" if t == 0 else vr(24); c1 = "0" if t == 0 else vr(28)
        a(f"v_mfma_f32_16x16x32_bf16 {vr(24)}, {vr(A)}, {vr(64+4*t)}, {c0}")
        a(f"v_mfma_f32_16x16x32_bf16 {vr(28)}, {vr(A)}, {vr(84+4*t)}, {c1}")
    issue()
    a(f"ds_write_b128 v49, {vr(24)}"); a(f"ds_write_b128 v49, {vr(28)} offset:1024")
    a("s_waitcnt lgkmcnt(0)"); a("s_barrier")
    for i in range(4):
        a(f"s_add_u32 s{36+i}, s{36+i}, 1"); a(f"s_and_b32 s{60+i}, s{36+i}, {TAGM}"); a(f"v_mov_b32 v{8+i}, s{60+i}")
    a("v_mov_b32 v36, v15")
    a("s_getreg_b32 s30, hwreg(HW_REG_XCC_ID, 0, 4)")
    a("s_lshl_b32 s35, s39, 4"); a("s_or_b32 s30, s30, s35"); a(f"s_and_b32 s30, s30, {TAGM}")
    a("s_bitcmp1_b32 s34, 0"); a("s_cbranch_scc0 L_noApub")
    for p in range(4): a(f"ds_read_b128 {vr(32+4*p)}, v48 offset:{p*2048}")
    a("s_lshl_b32 s35, s32, 3"); a("s_add_u32 s35, s35, s33"); a("s_lshl_b32 s35, s35, 10")
    a("s_lshr_b32 s78, s34, 1"); a(f"s_mul_i32 s78, s78, {GP-QP}"); a("s_add_u32 s35, s35, s78"); a(f"s_add_u32 s35, s35, {QP}")
    a("s_cmp_eq_u32 s34, 1"); a("s_cselect_b32 s78, s30, s63"); a("v_mov_b32 v3, s78")
    a("s_waitcnt lgkmcnt(0)")
    for i in range(4):
        a(f"v_add_f32 v{32+i}, v{32+i}, v{36+i}"); a(f"v_add_f32 v{40+i}, v{40+i}, v{44+i}")
    for i in range(4): a(f"v_add_f32 v{32+i}, v{32+i}, v{40+i}")
    a("v_add_u32 v36, s35, v15")
    for i in range(4): a(f"v_and_or_b32 v{32+i}, v{32+i}, s76, v{8+i if i < 3 else 3}")
    a.vmem(f"global_store_dwordx4 v36, {vr(32)}, s[28:29]", "Apub", "Apub")
    a("L_noApub:")
    stamp(3)
    issue(2)
    a("s_lshl_b32 s35, s32, 13"); a("s_lshr_b32 s78, s33, 2"); a("s_lshl_b32 s78, s78, 9"); a("s_add_u32 s35, s35, s78"); a(f"s_add_u32 s35, s35, {QP+4096}")
    a("v_lshrrev_b32 v16, 5, v0"); a("v_and_b32 v17, 31, v0"); a("v_lshlrev_b32 v3, 10, v16"); a("v_lshl_add_u32 v3, v17, 4, v3")
    a("v_add_u32 v3, s35, v3")
    a("v_lshlrev_b32 v39, 2, v16"); a("v_lshl_add_u32 v39, v17, 3, v39")
    a("v_and_b32 v40, 3, v2"); a("v_lshlrev_b32 v40, 6, v40"); a("v_lshl_add_u32 v40, v1, 4, v40")
    a("s_lshl_b32 s35, s32, 13"); a("s_and_b32 s78, s34, 1"); a("s_lshl_b32 s78, s78, 7"); a("s_add_u32 s35, s35, s78"); a(f"s_add_u32 s35, s35, {GP}")
    a("v_and_b32 v38, 3, v2"); a("v_lshlrev_b32 v38, 11, v38"); a("v_lshrrev_b32 v16, 3, v2"); a("v_lshl_add_u32 v38, v16, 9, v38"); a("v_lshl_add_u32 v38, v1, 5, v38")
    a("v_and_b32 v16, 4, v2"); a("v_lshl_add_u32 v38, v16, 2, v38")
    a("v_add_u32 v38, s35, v38")
    assert pos[0] <= stream.index(("q", 0))
    tgt = stream.index(("q", 0)) + DQ
    while pos[0] <= tgt and can_issue():
        if D < 14 and pos[0] - D >= 0 and stream[pos[0]-D][0] == "K": a.wait(f"K{stream[pos[0]-D][1]}")
        issue()
    a("s_cmp_eq_u32 s34, 1"); a("s_cbranch_scc0 L_noq")
    a.wait("q", "qw")
    a("L_qchk:")
    tagcheck(16, 16, 37, "s30")
    a("s_cbranch_vccnz L_qslow")
    a("L_qok:")
    slow.extend(["L_qslow:", "s_bitcmp1_b32 s31, 1", "s_cbranch_scc1 L_qs1", "s_bitset1_b32 s31, 1",
                 f"global_store_dwordx4 v36, {vr(32)}, s[28:29] sc1", "L_qs1:"])
    slow.extend([f"v_and_b32 v{19+4*i}, -16, v{19+4*i}" for i in range(4)])
    slow.extend(["v_or_b32 v37, v16, v17"] + [f"v_or3_b32 v37, v37, v{16+i}, v{17+i}" for i in range(2, 16, 2)])
    slow.extend([f"v_and_b32 v37, {TAGM}, v37", "v_cmp_ne_u32 vcc, 0, v37", "s_cbranch_vccnz L_qretry", "s_bitset1_b32 s31, 0", "s_branch L_qok"])
    retry("q", qloads)
    for i in range(8): a(f"v_add_f32 v{16+i}, v{16+i}, v{24+i}")
    for i in range(4): a(f"v_add_f32 v{16+i}, v{16+i}, v{20+i}")
    a("v_mov_b32 v20, s31"); a(f"v_mov_b32 v21, {LQ+256}")
    a("v_permlane32_swap_b32 v16, v18"); a("v_permlane32_swap_b32 v17, v19")
    a("v_add_f32 v16, v16, v18"); a("v_add_f32 v17, v17, v19")
    a("v_cvt_pk_bf16_f32 v16, v16, v17")
    a("ds_write_b32 v21, v20")
    a(f"ds_write_b32 v39, v16 offset:{LQ}")
    a("s_waitcnt lgkmcnt(0)")
    a("L_noq:")
    a("s_barrier")
    stamp(4)
    a(f"v_mov_b32 v21, {LQ+256}")
    a(f"ds_read_b128 v[24:27], v40 offset:{LQ}")
    a("ds_read_b32 v20, v21")
    issue()
    a("s_waitcnt lgkmcnt(0)")
    a("v_readfirstlane_b32 s31, v20")
    a("s_bitcmp1_b32 s31, 0"); a("s_cbranch_scc1 L_gufar"); a("L_gunear:")
    slow.extend(["L_gufar:", "s_cmp_eq_u32 s34, 3", "s_cbranch_scc0 L_gunear", f"global_store_dwordx4 v36, {vr(32)}, s[28:29] sc1", "s_branch L_gunear"])
    a("s_cmp_eq_u32 s64, 2"); a("s_cbranch_scc0 L_noh")
    a.wait("gup", "hc")
    a("L_gchk:")
    tagcheck(48, 16, 37)
    a("s_cbranch_vccnz L_gretry")
    retry("g", guloads)
    for b0 in (48, 56):
        for k in range(4): a(f"v_add_f32 v{b0+k}, v{b0+k}, v{b0+4+k}")
    for qpm in ("[1,0,3,2]", "[2,3,0,1]"):
        for b0 in (48, 56):
            for k in range(4): a(f"v_add_f32_dpp v{b0+k}, v{b0+k}, v{b0+k} quad_perm:{qpm} {DPPF}")
    rnd2(48, 49, 52); rnd2(50, 51, 53); rnd2(56, 57, 54); rnd2(58, 59, 55)
    c1 = -2*math.sqrt(2/math.pi)*LOG2E; c2 = c1*0.044715
    a(f"v_mov_b32 v60, 0x{f2u(c1):x}"); a(f"s_mov_b32 s35, 0x{f2u(c2):x}")
    for k in range(4): a(f"v_mul_f32 v{52+k}, v{48+k}, v{48+k}")
    for k in range(4): a(f"v_fma_f32 v{52+k}, v{52+k}, s35, v60")
    for k in range(4): a(f"v_mul_f32 v{52+k}, v{52+k}, v{48+k}")
    for k in range(4): a(f"v_exp_f32 v{52+k}, v{52+k}")
    for k in range(4): a(f"v_add_f32 v{52+k}, 1.0, v{52+k}")
    for k in range(4): a(f"v_rcp_f32 v{52+k}, v{52+k}")
    for k in range(4): a(f"v_mul_f32 v{48+k}, v{48+k}, v{52+k}")
    rnd2(48, 49, 52); rnd2(50, 51, 53)
    for k in range(4): a(f"v_mul_f32 v{48+k}, v{48+k}, v{56+k}")
    rnd2(48, 49, 52); rnd2(50, 51, 53)
    for k in range(4): a(f"v_or_b32 v{48+k}, v{48+k}, v{8+k}")
    a("s_lshl_b32 s35, s32, 1"); a("s_and_b32 s78, s34, 1"); a("s_add_u32 s35, s35, s78"); a("s_lshl_b32 s35, s35, 8"); a(f"s_add_u32 s35, s35, {HP}")
    a("v_and_b32 v52, 8, v2"); a("v_lshlrev_b32 v52, 4, v52"); a("v_and_b32 v53, 4, v2"); a("v_lshl_add_u32 v52, v53, 2, v52"); a("v_lshl_add_u32 v52, v1, 5, v52")
    a("v_add_u32 v52, s35, v52")
    a("s_mov_b32 exec_lo, 0x11111111"); a("s_mov_b32 exec_hi, 0x11111111")
    pub("hpub", "global_store_dwordx4 v52, v[48:51], s[28:29]", "hc")
    a("s_mov_b64 exec, -1")
    a("L_noh:")
    for t in range(4):
        for i in range(4): a(f"v_cndmask_b32_e64 v{32+4*t+i}, 0, v{24+i}, s[{68+2*t}:{69+2*t}]")
    issue()
    def qk_mfma(p):
        L = []
        for t in range(4):
            for uu in range(2):
                u = 2*p + uu; d = 16 + 8*(p % 2) + 4*uu
                L.append(f"v_mfma_f32_16x16x32_bf16 {vr(d)}, {ar(16*u+4*t)}, {vr(32+4*t)}, {'0' if t == 0 else vr(d)}")
        return L
    def qk_red(p):
        L = []
        for jj in range(4):
            for uu in range(2):
                u = 2*p + uu; d = 16 + 8*(p % 2) + 4*uu
                if jj == 0: L.append(f"v_mov_b32_dpp v{48+u}, v{d} quad_perm:[0,0,0,0] {DPPF}")
                else: L.append(f"v_add_f32_dpp v{48+u}, v{d+jj}, v{48+u} quad_perm:[{jj},{jj},{jj},{jj}] {DPPF}")
        u = 48 + 2*p
        if mimic:
            L += [f"v_cvt_pk_bf16_f32 v56, v{u}, v{u+1}", f"v_lshlrev_b32 v{u}, 16, v56", f"v_and_b32 v{u+1}, 0xffff0000, v56",
                  f"v_mul_f32 v{u}, 0x{f2u(128**-0.5):x}, v{u}", f"v_mul_f32 v{u+1}, 0x{f2u(128**-0.5):x}, v{u+1}",
                  f"v_cvt_pk_bf16_f32 v56, v{u}, v{u+1}", f"v_lshlrev_b32 v{u}, 16, v56", f"v_and_b32 v{u+1}, 0xffff0000, v56"]
        return L
    for p in range(5):
        M = qk_mfma(p) if p < 4 else []
        R = qk_red(p-1) if p > 0 else []
        if p < 4:
            ahead(("K", 8*p+7)); a.wait(f"K{8*p+7}")
        for m in M[:4]: a(m)
        M = M[4:]
        while M or R:
            for _ in range(4):
                if R: a(R.pop(0))
            if M: a(M.pop(0))
        kfree[0] = min(32, 8*(p+1))
        issue()
    sc = LOG2E if mimic else LOG2E * 128**-0.5
    a("v_max3_f32 v16, v48, v49, v50"); a("v_max3_f32 v17, v51, v52, v53"); a("v_max3_f32 v16, v16, v54, v55"); a("v_max_f32 v16, v16, v17")
    a(f"v_max_f32_dpp v16, v16, v16 row_ror:8 {DPPF}"); a(f"v_max_f32_dpp v16, v16, v16 row_ror:4 {DPPF}")
    a("v_max_f32_dpp v16, v16, v16 row_bcast:15 row_mask:0xa bank_mask:0xf")
    a("v_max_f32_dpp v16, v16, v16 row_bcast:31 row_mask:0xc bank_mask:0xf")
    a(f"v_mul_f32 v16, 0x{f2u(sc):x}, v16")
    a("v_readlane_b32 s35, v16, 63")
    a(f"v_mov_b32 v17, 0x{f2u(sc):x}")
    for u in range(8): a(f"v_fma_f32 v{48+u}, v{48+u}, v17, -s35")
    for u in range(8): a(f"v_exp_f32 v{48+u}, v{48+u}")
    a("v_add_f32 v18, v48, v49"); a("v_add_f32 v19, v50, v51"); a("v_add_f32 v20, v52, v53"); a("v_add_f32 v21, v54, v55")
    a("v_add_f32 v18, v18, v19"); a("v_add_f32 v20, v20, v21"); a("v_add_f32 v17, v18, v20")
    issue()
    for u in range(8): a(f"v_cvt_pk_bf16_f32 v{48+u}, v{48+u}, v{48+u}")
    a(f"v_add_f32_dpp v17, v17, v17 row_ror:8 {DPPF}"); a(f"v_add_f32_dpp v17, v17, v17 row_ror:4 {DPPF}")
    a("v_add_f32_dpp v17, v17, v17 row_bcast:15 row_mask:0xa bank_mask:0xf")
    a("v_add_f32_dpp v17, v17, v17 row_bcast:31 row_mask:0xc bank_mask:0xf")
    a("s_lshl_b32 s35, s34, 3"); a("s_add_u32 s35, s35, 8192"); a("v_mov_b32 v18, s35")
    a("s_mov_b32 exec_lo, 0"); a("s_mov_b32 exec_hi, 0x80000000")
    a("ds_write_b64 v18, v[16:17]")
    a("s_mov_b64 exec, -1")
    stamp(5)
    a("v_lshrrev_b32 v44, 3, v2"); a("v_lshlrev_b32 v44, 2, v44"); a("v_and_b32 v45, 3, v2"); a("v_add_u32 v44, v44, v45"); a("v_lshlrev_b32 v44, 11, v44")
    a("s_lshl_b32 s35, s32, 14"); a(f"s_add_u32 s35, s35, {OP}"); a("v_add_u32 v44, s35, v44")
    a("v_and_b32 v46, 4, v2"); a("v_lshlrev_b32 v46, 2, v46"); a("v_lshl_add_u32 v46, v1, 5, v46"); a("s_lshl_b32 s78, s34, 7"); a("v_add3_u32 v45, v46, s78, v44")
    a("v_add_u32 v44, 512, v44")
    a("s_cmp_eq_u32 s64, 1"); a("s_cbranch_scc0 L_noha")
    a("s_lshl_b32 s78, s32, 1"); a("s_and_b32 s79, s34, 1"); a("s_add_u32 s78, s78, s79"); a("s_lshl_b32 s78, s78, 8"); a(f"s_add_u32 s78, s78, {HP}")
    a("v_and_b32 v44, 8, v2"); a("v_lshlrev_b32 v44, 4, v44"); a("v_add3_u32 v44, v44, s78, v46")
    a("L_noha:")
    a("s_lshl_b32 s78, s33, 11"); a("s_add_u32 s35, s35, s78"); a("v_add_u32 v46, s35, v15")
    a("v_lshlrev_b32 v47, 4, v0"); a("s_lshl_b32 s78, s34, 10"); a("v_add_u32 v47, s78, v47")
    a("s_add_u32 s78, s14, 32"); a("s_cmp_eq_u32 s64, 0"); a("s_cselect_b32 s78, s32, s78")
    a("s_lshl_b32 s35, s65, 6"); a("s_add_u32 s35, s35, s78"); a(f"s_mul_i32 s35, s35, {YS}"); a(f"s_add_u32 s35, s35, {YY}")
    a("v_add_u32 v3, s35, v15")
    def gate_loads():
        a("s_lshr_b32 s78, s32, 4"); a("s_mul_i32 s35, s78, 1280")
        a("v_lshlrev_b32 v40, 4, v0"); a("v_add_u32 v41, s35, v40")
        for k in range(4): a(f"v_mov_b32 v{24+k}, 0"); a(f"v_mov_b32 v{36+k}, 0")
        a.vmem("global_load_dwordx4 v[16:19], v41, s[4:5]", "fx", "fin")
        a.vmem("global_load_dwordx4 v[20:23], v40, s[22:23]", "fx", "fin")
        a("s_mov_b64 exec, 0xffff")
        a.vmem("global_load_dwordx4 v[24:27], v41, s[4:5] offset:1024", "fx", "fin")
        a.vmem("global_load_dwordx4 v[36:39], v40, s[22:23] offset:1024", "fx", "fin")
        a("s_mov_b64 exec, 1")
        a.vmem("buffer_load_ushort v43, v40, s[56:59], 0 offen", "fo", "fin")
        a("s_mov_b64 exec, -1")
    def gate_math():
        first = True
        for xb, wb in ((16, 20), (24, 36)):
            for k in range(4):
                x, w = xb+k, wb+k
                a(f"v_lshlrev_b32 v40, 16, v{x}"); a(f"v_lshlrev_b32 v41, 16, v{w}"); a("v_mul_f32 v40, v40, v41")
                a(f"v_and_b32 v{x}, 0xffff0000, v{x}"); a(f"v_and_b32 v{w}, 0xffff0000, v{w}"); a(f"v_mul_f32 v41, v{x}, v{w}")
                rnd2(40, 41, x)
                if first: a("v_add_f32 v42, v40, v41")
                else: a("v_add_f32 v42, v42, v40"); a("v_add_f32 v42, v42, v41")
                first = False
        for m in ("quad_perm:[1,0,3,2]", "quad_perm:[2,3,0,1]", "row_half_mirror", "row_mirror"):
            a(f"v_add_f32_dpp v42, v42, v42 {m} {DPPF}")
        a("v_add_f32_dpp v42, v42, v42 row_bcast:15 row_mask:0xa bank_mask:0xf")
        a("v_add_f32_dpp v42, v42, v42 row_bcast:31 row_mask:0xc bank_mask:0xf")
        a("v_readlane_b32 s35, v42, 63")
        a("v_cvt_pk_bf16_f32 v42, s35, s35"); a("v_lshlrev_b32 v42, 16, v42")
        a(f"v_mul_f32 v42, 0x{f2u(-LOG2E):x}, v42"); a("v_exp_f32 v42, v42"); a("v_add_f32 v42, 1.0, v42"); a("v_rcp_f32 v42, v42")
        a("v_cvt_pk_bf16_f32 v42, v42, v42"); a("v_lshlrev_b32 v42, 16, v42")
        if not GE: a("s_waitcnt vmcnt(0)")
        a("v_sub_f32 v43, 1.0, v42"); a("v_cvt_pk_bf16_f32 v43, v43, v43"); a("v_lshlrev_b32 v43, 16, v43")
        a("v_cmp_gt_u32 vcc, 44, v0"); a("v_cndmask_b32 v41, 0, v43, vcc")
    def if_final(lab):
        a("s_cmp_lt_u32 s15, 20"); a(f"s_cbranch_scc0 {lab}")
    if GE:
        if_final("L_ng1"); gate_loads(); a("L_ng1:")
        G_AT = stream[pos[0]-1][1] + 1
        assert stream[pos[0]-1][0] == "V" and G_AT < 28
    for i in range(32):
        u, t = i >> 2, i & 3
        A = 56 + 4*(i % 2)
        for q in range(4): a(f"v_and_b32_dpp v{A+q}, v{48+u}, v{4+q} row_newbcast:{4*t} {DPPF}")
        if i in sync: a("s_barrier")
        ahead(("V", i))
        if i == 31:
            while can_issue(): issue()
        if GE and i == G_AT:
            if_final("L_ng2"); a.wait("fo", "fin"); gate_math(); a("L_ng2:")
        if i == ML_AT:
            a("s_cmp_lg_u32 s34, 0"); a("s_cbranch_scc1 L_noml")
            a("v_mov_b32 v16, 8192")
            a("L_mlw:")
            a("ds_read_b128 v[20:23], v16"); a("ds_read_b128 v[24:27], v16 offset:16")
            a("s_sub_u32 s77, s77, 1"); a("s_cbranch_scc1 L_exit")
            a("s_waitcnt lgkmcnt(0)")
            a("v_min3_u32 v17, v23, v25, v27"); a("v_cmp_eq_u32 vcc, 0, v17"); a("s_cbranch_vccnz L_mlw")
            a("v_max3_f32 v16, v20, v22, v24"); a("v_max_f32 v16, v16, v26")
            for w in range(4): a(f"v_sub_f32 v{40+w}, v{20+2*w}, v16")
            for w in range(4): a(f"v_exp_f32 v{40+w}, v{40+w}")
            a("v_mul_f32 v18, v40, v21"); a("v_fmac_f32 v18, v41, v23"); a("v_fmac_f32 v18, v42, v25"); a("v_fmac_f32 v18, v43, v27")
            a("v_mov_b32 v17, s36"); a("v_mov_b32 v19, s37")
            a("s_mov_b64 exec, 1")
            pub("mlpub", "global_store_dwordx4 v46, v[16:19], s[28:29] offset:512", "lead")
            a("s_mov_b64 exec, -1")
            a("L_noml:")
        a.wait(f"V{i}")
        if i == 31: stamp(6)
        c = "0" if i == 0 else vr(32)
        a(f"v_mfma_f32_16x16x32_bf16 {vr(32)}, {vr(A)}, {vreg(i)}, {c}")
    if NH:
        a("s_cmp_eq_u32 s64, 1"); a("s_cbranch_scc0 L_hold")
        for i in range(8-NH, 8): a.vmem(cload(i), f"C{i}", "ffn")
        a("L_hold:")
    a(f"ds_write_b128 v47, {vr(32)}")
    a("s_waitcnt lgkmcnt(0)"); a("s_barrier")
    a("s_cmp_lg_u32 s34, 0"); a("s_cbranch_scc1 L_noopub")
    for p in range(1, 4): a(f"ds_read_b128 {vr(12+4*p)}, v47 offset:{p*1024}")
    for k in range(4): a(f"v_mul_f32 v{32+k}, v40, v{32+k}")
    a("s_mov_b32 exec_hi, 0")
    a("s_waitcnt lgkmcnt(0)")
    for p in range(1, 4):
        for k in range(4): a(f"v_fmac_f32 v{32+k}, v{40+p}, v{12+4*p+k}")
    settag(32, 32)
    pub("opub", f"global_store_dwordx4 v46, {vr(32)}, s[28:29]", "lead")
    a("s_mov_b32 exec_hi, -1")
    a("L_noopub:")
    stamp(7)
    a("s_cmp_eq_u32 s64, 0"); a("s_cbranch_scc0 L_notwo")
    a("s_barrier")
    a.vmem("global_load_dwordx4 v[16:19], v45, s[28:29] sc1", "op", "wo")
    a.wait("ml", "wo")
    a("L_mchk:")
    a("v_xor_b32 v29, s36, v29"); a("v_xor_b32 v31, s37, v31"); a("v_or_b32 v29, v29, v31"); a("v_cmp_ne_u32 vcc, 0, v29")
    a("s_cbranch_vccnz L_mretry")
    retry("m", [mlload])
    if HD: a(f"s_nop {HD-1}")
    for i in range(8-NH, 8): a.vmem(cload(i), f"C{i}", "wo")
    a(f"v_max_f32_dpp v29, v28, v28 quad_perm:[1,0,3,2] {DPPF}"); a(f"v_max_f32_dpp v29, v29, v29 quad_perm:[2,3,0,1] {DPPF}")
    a("v_sub_f32 v28, v28, v29"); a("v_exp_f32 v28, v28"); a("v_mul_f32 v30, v30, v28")
    a(f"v_add_f32_dpp v30, v30, v30 quad_perm:[1,0,3,2] {DPPF}"); a(f"v_add_f32_dpp v30, v30, v30 quad_perm:[2,3,0,1] {DPPF}")
    a("v_rcp_f32 v30, v30"); a("v_mul_f32 v28, v28, v30")
    a(f"s_waitcnt vmcnt({NH})")
    if tailst: stamp(1)
    a("s_branch L_ochk")
    a("L_oloop:")
    a("global_load_dwordx4 v[16:19], v45, s[28:29] sc1")
    a("s_sub_u32 s77, s77, 1"); a("s_cbranch_scc1 L_exit")
    a("s_waitcnt vmcnt(0)")
    a("L_ochk:")
    tagcheck(16, 4, 20)
    a("s_cbranch_vccnz L_oloop")
    stamp(8)
    for k in range(4): a(f"v_mul_f32 v{16+k}, v28, v{16+k}")
    for qpm in ("[1,0,3,2]", "[2,3,0,1]"):
        for k in range(4): a(f"v_add_f32_dpp v{16+k}, v{16+k}, v{16+k} quad_perm:{qpm} {DPPF}")
    for k in range(4): a(f"v_cvt_pk_bf16_f32 v{36+k}, v{16+k}, v{16+k}")
    a("L_cstage:")
    def cm(t):
        a(f"s_waitcnt vmcnt({7-t})")
        if tailst and t == 7: stamp(3)
        a(f"v_mfma_f32_16x16x32_bf16 {vr(32)}, {vr(64+4*t)}, {ar(64+4*t)}, {'0' if t == 0 else vr(32)}")
    done = 0
    for t in range(8):
        A = 64 + 4*t; hp = t >> 2; jj = t & 3
        for q in range(4):
            if (q >> 1) == hp: a(f"v_and_b32 v{A+q}, v{36+jj}, v{4+q}")
            else: a(f"v_and_b32_dpp v{A+q}, v{36+jj}, v{4+q} row_half_mirror {DPPF}")
        if t > 0 and done < max(8-NH, 4): cm(done); done += 1
    while done < 8: cm(done); done += 1
    a(f"ds_write_b128 v47, {vr(32)} offset:4096")
    a("s_waitcnt lgkmcnt(0)"); a("s_barrier")
    a("s_cmp_eq_u32 s64, 0"); a("s_cbranch_scc0 L_ffnred")
    a("s_cmp_lg_u32 s34, 0"); a("s_cbranch_scc1 L_final")
    for p in range(1, 4): a(f"ds_read_b128 {vr(12+4*p)}, v47 offset:{4096+p*1024}")
    a("s_waitcnt lgkmcnt(0)")
    for k in range(4): a(f"v_add_f32 v{32+k}, v{32+k}, v{16+k}")
    for k in range(4): a(f"v_add_f32 v{20+k}, v{20+k}, v{24+k}")
    for k in range(4): a(f"v_add_f32 v{32+k}, v{32+k}, v{20+k}")
    settag(32, 32)
    a(f"global_store_dwordx4 v3, {vr(32)}, s[28:29] sc1")
    a("s_branch L_end")
    a("L_notwo:")
    a("s_cmp_eq_u32 s64, 1"); a("s_cbranch_scc0 L_final")
    a.wait("ml", "ffn")
    a("L_hchk:")
    tagcheck(28, 4, 20)
    a("s_cbranch_vccnz L_hretry")
    retry("h", [mlload])
    for k in range(4): a(f"v_cvt_pk_bf16_f32 v{36+k}, v{28+k}, v{28+k}")
    a("s_branch L_cstage")
    a("L_ffnred:")
    a("s_bitcmp1_b32 s34, 0"); a("s_cbranch_scc1 L_end")
    a(f"ds_read_b128 {vr(20)}, v47 offset:{4096+1024}")
    a("s_waitcnt lgkmcnt(0)")
    for k in range(4): a(f"v_add_f32 v{32+k}, v{32+k}, v{20+k}")
    settag(32, 32)
    a(f"global_store_dwordx4 v3, {vr(32)}, s[28:29] sc1")
    a("s_branch L_end")
    a("L_final:")
    a("s_cmp_lt_u32 s15, 20"); a("s_cbranch_scc0 L_end")
    if tailst: stamp(5)
    if not GE:
        gate_loads(); a("s_waitcnt vmcnt(1)"); gate_math()
    a("s_lshr_b32 s78, s32, 4")
    a("s_lshl_b32 s35, s15, 1"); a("s_cmp_ge_u32 s15, 10"); a("s_cselect_b32 s79, 19, 0"); a("s_sub_u32 s35, s35, s79")
    a("s_lshr_b32 s79, s32, 3"); a("s_mul_i32 s65, s79, 20"); a("s_add_u32 s65, s65, s35")
    a("s_mul_i32 s79, s78, 40"); a("s_sub_u32 s79, s65, s79")
    a("s_lshr_b32 s35, s79, 3"); a(f"s_mul_i32 s35, s35, {64*YS}"); a("s_and_b32 s79, s79, 7"); a("s_lshl_b32 s79, s79, 6"); a("s_add_u32 s35, s35, s79")
    a("s_lshl_b32 s79, s78, 9"); a("s_add_u32 s35, s35, s79"); a(f"s_add_u32 s35, s35, {YY}")
    a("v_and_b32 v44, 3, v0"); a("v_lshl_add_u32 v45, v44, 4, s35"); a("v_lshrrev_b32 v51, 2, v0")
    a(f"s_movk_i32 s79, {YS}")
    a("v_mad_u32_u24 v48, v51, s79, v45"); a(f"v_add_u32 v49, {16*YS}, v48"); a(f"v_add_u32 v50, {32*YS}, v48")
    a("v_min_u32 v51, 10, v51"); a("v_add_u32 v51, 48, v51"); a("v_mad_u32_u24 v51, v51, s79, v45")
    a("v_lshl_add_u32 v44, v44, 2, v1"); a("v_lshlrev_b32 v44, 1, v44"); a("s_lshl_b32 s66, s65, 5")
    if tailst: stamp(3)
    a("L_yloop:")
    if FSL:
        a("s_bcnt1_i32_b64 s35, exec"); a(f"s_cmp_gt_u32 s35, {FSL[0]}"); a("s_cbranch_scc0 L_ynosl"); a(f"s_sleep {FSL[1]}"); a("L_ynosl:")
    for t in range(4): a(f"global_load_dwordx4 {vr(16+4*t)}, v{48+t}, s[28:29] sc1")
    a("s_sub_u32 s77, s77, 1"); a("s_cbranch_scc1 L_exit")
    a("s_waitcnt vmcnt(0)")
    tagcheck(16, 16, 32)
    a("s_and_b64 exec, exec, vcc")
    a("s_cbranch_scc1 L_yloop")
    a("s_mov_b64 exec, -1")
    if tailst: stamp(2)
    for k in range(4): a(f"v_add_f32 v{16+k}, v{16+k}, v{20+k}")
    for k in range(4): a(f"v_mul_f32 v{24+k}, v43, v{24+k}")
    for k in range(4): a(f"v_fmac_f32 v{24+k}, v41, v{28+k}")
    for k in range(4): a(f"v_fma_f32 v{16+k}, v42, v{16+k}, v{24+k}")
    a("v_permlane32_swap_b32 v16, v18"); a("v_permlane32_swap_b32 v17, v19")
    a("v_add_f32 v16, v16, v18"); a("v_add_f32 v17, v17, v19")
    a("v_permlane16_swap_b32 v16, v17")
    a("v_add_f32 v16, v16, v17")
    for m in ("row_ror:8", "row_ror:4"): a(f"v_add_f32_dpp v16, v16, v16 {m} {DPPF}")
    a("v_cvt_pk_bf16_f32 v16, v16, v16")
    a("s_mov_b32 exec_lo, 0x000f000f"); a("s_mov_b32 exec_hi, exec_lo")
    a(f"buffer_store_short v16, v44, s[56:59], s66 offen {outpol}")
    if stamps: a("s_mov_b32 s64, 3")
    a("s_cmp_lg_u32 s65, 0"); a("s_cbranch_scc1 L_end")
    a("s_mov_b64 exec, 1")
    for k in range(4): a(f"v_mov_b32 v{28+k}, s{36+k}")
    a("v_mov_b32 v24, 0")
    a(f"global_store_dwordx4 v24, v[28:31], s[28:29] {outpol}")
    a("L_end:")
    if diag:
        base, mul, k0, k1, msk, val, src = diag
        stamp(9)
        a("s_waitcnt lgkmcnt(0)")
        a("s_cmp_eq_u32 s64, 2"); a("s_cbranch_scc1 L_exit")
        a("s_getreg_b32 s79, hwreg(HW_REG_XCC_ID, 0, 4)")
        a(f"s_and_b32 s35, {src}, {msk}"); a(f"s_cmp_eq_u32 s35, {val}"); a("s_cbranch_scc0 L_exit")
        if k0 < 0: a("s_mov_b32 s35, s79")
        else: a(f"s_sub_u32 s35, s{80+2*k1}, s{80+2*k0}")
        a(f"s_mul_i32 s35, s35, {mul}"); a(f"s_add_u32 s35, s35, {base}")
        a("s_min_u32 s35, s35, 30000")
        a("L_diag:")
        a("s_memrealtime s[78:79]"); a("s_waitcnt lgkmcnt(0)"); a("s_sub_u32 s78, s78, s80"); a("s_cmp_lt_u32 s78, s35"); a("s_cbranch_scc1 L_diag")
    if stamps:
        stamp(9)
        a("s_mov_b64 exec, 1")
        a("s_lshl_b32 s3, s2, 2"); a("s_add_u32 s3, s3, s34"); a("s_lshl_b32 s3, s3, 6"); a("s_add_u32 s3, s3, 0x10000000")
        a("v_mov_b32 v3, s3")
        a("s_getreg_b32 s35, hwreg(HW_REG_XCC_ID)")
        a("s_waitcnt lgkmcnt(0)")
        a("s_getreg_b32 s78, hwreg(HW_REG_HW_ID)")
        vals = [f"s{80+2*k}" for k in range(10)] + ["s35", "s64", "s78", "s77", "s31", "s77"]
        for q in range(4):
            for k in range(4): a(f"v_mov_b32 v{48+4*q+k}, {vals[4*q+k]}")
            a(f"global_store_dwordx4 v3, {vr(48+4*q)}, s[28:29] offset:{16*q}")
    a("L_exit:")
    a("s_endpgm")
    if ool:
        for lab in ("L_noh", "L_ng1", "L_ng2", "L_nogp", "L_noha"):
            if lab + ":" not in a.L: continue
            end = a.L.index(lab + ":")
            brs = [i for i, l in enumerate(a.L) if l.startswith("s_cbranch_scc") and l.endswith(" " + lab)]
            b = brs[0]
            body = a.L[b+1:end]
            inv = "s_cbranch_scc1" if a.L[b].startswith("s_cbranch_scc0") else "s_cbranch_scc0"
            a.L[b:end] = [f"{inv} {lab}_do"]
            slow = [f"{lab}_do:"] + body + [f"s_branch {lab}"] + slow
    for l in slow: a(l)
    if abl:
        L2 = []; phase = 0
        for l in a.L:
            if "chk" not in abl and (l.startswith("s_cbranch_vccnz") or l == "s_cbranch_scc1 L_yloop"): continue
            if "noq" in abl and l in qloads: l = "buffer_load_dwordx4 v[16:19], v13, s[72:75], 0 offen"
            if l == "L_noApub:": phase = 1
            if l.startswith("ds_write_b128 v47"): phase = 3 if "offset" in l else 2
            if l.startswith("global_store") and "v3, v[4" not in l and "v3, v[5" not in l and "v3, v[6" not in l:
                if "nostore" in abl or f"nost{phase}" in abl: continue
                if "plain" in abl: l = l.replace(" sc1", "")
                if "stnt" in abl: l = l.replace(" sc1", " nt")
                if "st01" in abl: l = l.replace(" sc1", " sc0 sc1")
                if "st1nt" in abl: l = l.replace(" sc1", " sc1 nt")
            if "nopf" in abl and l.startswith("v_min_u32 v1, L_last"): l = "v_mov_b32 v1, 0"
            if "nomfma" in abl and l.startswith("v_mfma"): continue
            if "novalu" in abl and ("_dpp" in l or l.startswith(("v_exp","v_cvt_pk","v_xor","v_or3","v_cndmask_b32_e64","v_fma","v_mul_f32","v_add_f32"))): continue
            if "noq" in abl and l.startswith("s_mov_b32 s74"): l = "s_mov_b32 s74, 0"
            if "noq" in abl and l.startswith("s_mov_b32 s75"): l = "s_mov_b32 s75, 0x20000"
            if "noq" in abl and l.startswith("s_mov_b32 s72"): l = "s_mov_b32 s72, s8"
            if "noq" in abl and l.startswith("s_mov_b32 s73"): l = "s_mov_b32 s73, s9"
            L2.append(l)
        a.L = L2
    body, nn = fix_hazards(a.L)
    out = [HEADER.rstrip("\n"), "; @launch grid=(256,1,1) block=(256,1,1) lds=8704",
           '.amdgcn_target "amdgcn-amd-amdhsa--gfx950"', ".text", f".globl {KN}"] + ([".p2align 12"] + ([f".fill {pad//4}, 4, 0xbf800000"] if pad else []) if pad is not None else []) + [".p2align 8", f".type {KN},@function"]
    out += [l if l.endswith(":") else "    " + l for l in body]
    out += ["L_last:", "    s_endpgm",
            '.section .rodata,"a"', ".p2align 6", f".amdhsa_kernel {KN}",
            f"  .amdhsa_next_free_vgpr {nfv}", "  .amdhsa_next_free_sgpr 102", "  .amdhsa_accum_offset 128",
            "  .amdhsa_group_segment_fixed_size 0", "  .amdhsa_kernarg_size 104", "  .amdhsa_user_sgpr_count 2",
            "  .amdhsa_user_sgpr_kernarg_segment_ptr 1", "  .amdhsa_system_sgpr_workgroup_id_x 1", ".end_amdhsa_kernel"]
    return "\n".join(out) + "\n", nn
if __name__ == "__main__":
    s, nn = gen()
    open("g7.s", "w").write(s)
    print("nops inserted", nn)
```

```python
import sys, struct, math
from asmlib import Asm, fix_hazards
KN = "gated_mix__sliding_block_cached__geglu_ffn__decode_kernel"
def f2u(x): return struct.unpack("<I", struct.pack("<f", x))[0]
LOG2E = 1.4426950408889634
TAGM = 0x3ff
AP, OP, HP, GG, YF, YY = 0x10000, 0x50000, 0x90000, 0x98000, 0xa0000, 0x140000
PL = 0x130000
LML, LQ, LDS = 8192, 8256, 8704
DPPF = "row_mask:0xf bank_mask:0xf"
HEADER = open("gated_mix__sliding_block_cached__geglu_ffn__decode.s.ref").read().split("; Override launch")[0]

def gen(D=16, qp=28, DQ=12, PRE=12, KF=4, rot=(5,3), pol="nt", SPIN=200000, ML_AT=6, sync=(16,), FX=0, light5=29,
        FP2=2, YP=0, YT=1, otouch=True, RACE=(4,2), GPOS=22, pf=True, pk=True, pad=0, perm=0, stamps=False, lite=False, tailst=False):
    a = Asm()
    lights = sorted({FX, FX+8, FX+16, FX+24, light5}); assert len(lights) == 5
    remap = tuple(zip([x for x in lights if x < 27], [x for x in range(27, 32) if x not in lights]))
    END = "s_branch L_end" if stamps else "s_endpgm"
    def stamp(k):
        if stamps and not (lite and k not in (0, 6, 9)): a(f"s_memrealtime s[{80+2*k}:{81+2*k}]")
    def vr(b, n=4): return f"v[{b}:{b+n-1}]"
    def ar(b, n=4): return f"a[{b}:{b+n-1}]"
    def untag(dst, src, n, tmp, cc="vcc", t3="s63"):
        for i in range(n): a(f"v_xor_b32 v{dst+i}, {t3 if i%4 == 3 else 's%d' % (60+i%4)}, v{src+i}")
        a(f"v_or_b32 v{tmp}, v{dst}, v{dst+1}")
        for i in range(2, n, 2): a(f"v_or3_b32 v{tmp}, v{tmp}, v{dst+i}, v{dst+i+1}")
        a(f"v_and_b32 v{tmp}, {TAGM}, v{tmp}")
        a(f"v_cmp_ne_u32 {cc}, 0, v{tmp}")
    def settag(dst, t3=11):
        for i in range(4): a(f"v_and_or_b32 v{dst+i}, v{dst+i}, s76, v{8+i if i < 3 else t3}")
    def rnd2(x, y, tmp):
        a(f"v_cvt_pk_bf16_f32 v{tmp}, v{x}, v{y}")
        a(f"v_lshlrev_b32 v{x}, 16, v{tmp}")
        a(f"v_and_b32 v{y}, 0xffff0000, v{tmp}")
    def add4(d, x, y):
        if pk:
            for k in (0, 2): a(f"v_pk_add_f32 {vr(d+k,2)}, {vr(x+k,2)}, {vr(y+k,2)}")
        else:
            for k in range(4): a(f"v_add_f32 v{d+k}, v{x+k}, v{y+k}")
    def bc(s):
        return vr(s & ~1, 2), s & 1
    def mul4(d, s, x):
        if pk:
            p, o = bc(s)
            for k in (0, 2): a(f"v_pk_mul_f32 {vr(d+k,2)}, {p}, {vr(x+k,2)} op_sel:[{o},0] op_sel_hi:[{o},1]")
        else:
            for k in range(4): a(f"v_mul_f32 v{d+k}, v{s}, v{x+k}")
    def fma4(d, s, x, c):
        if pk:
            p, o = bc(s)
            for k in (0, 2): a(f"v_pk_fma_f32 {vr(d+k,2)}, {p}, {vr(x+k,2)}, {vr(c+k,2)} op_sel:[{o},0,0] op_sel_hi:[{o},1,1]")
        else:
            for k in range(4): a(f"v_fma_f32 v{d+k}, v{s}, v{x+k}, v{c+k}")
    slow = []
    def pub(name, text, role):
        a.vmem(text, name, role)
        a("s_bitcmp1_b32 s31, 0"); a(f"s_cbranch_scc1 L_{name}far"); a(f"L_{name}near:")
        slow.extend([f"L_{name}far:", text + " sc1", f"s_branch L_{name}near"])
    def retry(name, loads):
        slow.append(f"L_{name}retry:"); slow.extend(loads)
        slow.extend(["s_sub_u32 s77, s77, 1", "s_waitcnt vmcnt(0)", "s_cbranch_scc1 L_exit", f"s_branch L_{name}chk"])

    stream = [("K", i) for i in range(qp)] + [("q", 0)] + [("K", i) for i in range(qp, 32)] + [("V", i) for i in range(32)] + [("ml", 0)] + [("C", i) for i in range(8)]
    pos = [0]; kfree = [0]
    def vreg(i): return vr(64+4*i) if i < 16 else ar(4*(i-16))
    qloads = [f"global_load_dwordx4 {vr(16+4*e)}, v3, s[28:29] offset:{e*4096-2048} sc1" for e in range(2)]
    guloads = [f"global_load_dwordx4 {vr(48+4*gu)}, v38, s[28:29] offset:{gu*1024} sc1" for gu in range(2)]
    mlload = "global_load_dwordx4 v[28:31], v44, s[28:29] sc1"
    gload = "global_load_dwordx2 v[36:37], v38, s[28:29] sc1"
    def can_issue():
        if pos[0] >= len(stream): return False
        k, i = stream[pos[0]]
        return not (k == "V" and i >= 16 and kfree[0] <= i - 16)
    def issue(n=1):
        for _ in range(n):
            if not can_issue(): return
            k, i = stream[pos[0]]; pos[0] += 1
            if k == "K" or k == "V":
                if k == "K": a.vmem(f"buffer_load_dwordx4 {ar(4*i)}, v12, s[44:47], s3 offen {pol}", f"K{i}")
                else: a.vmem(f"buffer_load_dwordx4 {vreg(i)}, v13, s[48:51], s3 offen {pol}", f"V{i}")
                a("s_addk_i32 s3, 4096"); a("s_bitset0_b32 s3, 17")
            elif k == "q":
                a("s_cmp_eq_u32 s34, 1"); a("s_cbranch_scc0 L_noqp")
                for t in qloads: a.vmem(t, "q", "qw")
                a("L_noqp:")
                a("s_cmp_eq_u32 s64, 2"); a("s_cbranch_scc0 L_nogp")
                for t in guloads: a.vmem(t, "gup", "hc")
                a("L_nogp:")
            elif k == "ml":
                if YT == 1: a.vmem("buffer_load_dword v28, v39, s[20:23], 0 offen sc1", "yt")
                if otouch: a.vmem("global_load_dword v28, v45, s[28:29] sc1", "ot")
                a.vmem(gload.replace(" sc1", ""), "gg")
                a.vmem(mlload.replace(" sc1", ""), "ml")
            elif k == "C":
                a.vmem(f"buffer_load_dwordx4 {ar(64+4*i)}, v14, s[52:55], {'s66' if i < 4 else 's67'} offen offset:{(i%4)*1280} {pol}", f"C{i}")
    def ahead(item):
        tgt = stream.index(item) + D
        while pos[0] <= tgt and can_issue(): issue()

    a(f"{KN}:")
    stamp(0)
    a("s_load_dwordx2 s[44:45], s[0:1], 8")
    a("s_cmpk_ge_u32 s2, 0x100")
    a("s_cbranch_scc1 L_exit")
    if perm == 1:
        a("s_lshr_b32 s3, s2, 3"); a("s_and_b32 s2, s2, 7"); a("s_lshl_b32 s2, s2, 5"); a("s_or_b32 s2, s2, s3")
    if perm == 2:
        a("s_cmp_ge_u32 s2, 224"); a("s_cselect_b32 s3, 1, 0"); a("s_xor_b32 s2, s2, s3")
    a("v_lshrrev_b32 v1, 6, v0")
    if pf:
        a("s_getpc_b64 s[30:31]")
        a("L_pc:")
        a("s_lshr_b32 s3, s2, 3"); a("s_lshl_b32 s3, s3, 9")
        a("v_lshl_add_u32 v3, v1, 7, s3")
        a("v_min_u32 v3, L_last-L_pc-256, v3")
        a.vmem("global_load_dword v3, v3, s[30:31] offset:256", "pf")
    a("v_and_b32 v0, 63, v0")
    a("v_readfirstlane_b32 s34, v1")
    a("s_and_b32 s32, s2, 31")
    a("s_lshr_b32 s33, s2, 5")
    a("v_lshrrev_b32 v1, 4, v0")
    a("v_and_b32 v2, 15, v0")
    a("s_brev_b32 s46, 16"); a("s_mov_b32 s47, 0x20000"); a("s_mov_b64 s[50:51], s[46:47]")
    a("s_lshr_b32 s3, s33, 2"); a("s_lshl_b32 s3, s3, 5"); a("s_add_u32 s3, s3, s32"); a("s_lshl_b32 s3, s3, 4")
    a("s_or_b32 s67, s33, 12"); a("s_or_b32 s3, s3, s67"); a("s_lshl_b32 s3, s3, 7"); a("s_add_u32 s3, s3, s34"); a("s_lshl_b32 s3, s3, 10")
    a("v_lshl_add_u32 v12, v2, 2, v1"); a("v_lshl_add_u32 v12, v12, 4, s3")
    a("v_lshl_add_u32 v13, v0, 4, s3")
    a(f"s_mul_i32 s3, s32, {rot[0]}"); a(f"s_mul_i32 s67, s33, {rot[1]}"); a("s_add_u32 s3, s3, s67")
    a("s_and_b32 s3, s3, 31"); a("s_lshl_b32 s3, s3, 12")
    a("s_mov_b32 s40, s32")
    for x, y in remap:
        a(f"s_cmp_eq_u32 s32, {x}"); a(f"s_cselect_b32 s40, {y}, s40"); a(f"s_cmp_eq_u32 s32, {y}"); a(f"s_cselect_b32 s40, {x}, s40")
    a("s_lshr_b32 s35, s33, 1"); a("s_lshl_b32 s35, s35, 2"); a("s_add_u32 s35, s35, s34"); a("s_mulk_i32 s35, 40")
    a("v_mad_u32_u24 v40, v1, 10, s35")
    a("s_and_b32 s41, s33, 1")
    a("s_lshl_b32 s78, s32, 1"); a("s_add_u32 s78, s78, s41"); a("s_lshl_b32 s78, s78, 7"); a("s_lshl_b32 s79, s40, 7")
    a("s_mov_b32 vcc_lo, 0xff00ff00"); a("s_mov_b32 vcc_hi, vcc_lo")
    a("v_mov_b32 v38, 0x2000"); a("v_mov_b32 v39, 3456"); a("v_cndmask_b32 v38, v38, v39, vcc"); a("v_mov_b32 v39, 0")
    a("v_mov_b32 v41, s78"); a("v_mov_b32 v42, s79"); a("v_cndmask_b32 v41, v41, v42, vcc")
    a("v_and_b32 v42, 7, v2"); a("v_lshl_add_u32 v41, v42, 4, v41"); a("v_mad_u32_u24 v36, v40, v38, v41"); a("v_mov_b32 v37, 0")
    a("v_lshrrev_b32 v44, 3, v2"); a("v_mul_u32_u24 v44, 1280, v44"); a("v_lshl_add_u32 v44, v40, 1, v44")
    a("s_waitcnt lgkmcnt(0)")
    stamp(1)
    a("s_load_dwordx16 s[4:19], s[0:1], 0")
    issue(KF)
    a("s_waitcnt lgkmcnt(0)")
    a("s_load_dwordx8 s[20:27], s[0:1], 64")
    a("s_load_dwordx2 s[28:29], s[0:1], 96")
    a("s_cmp_eq_u32 s41, 0"); a("s_cselect_b64 s[16:17], s[16:17], s[18:19]")
    a("v_mov_b32 v34, s10"); a("v_mov_b32 v35, s11"); a("v_mov_b32 v32, s16"); a("v_mov_b32 v33, s17")
    a("v_cndmask_b32 v34, v34, v32, vcc"); a("v_cndmask_b32 v35, v35, v33, vcc")
    a("s_not_b64 s[42:43], vcc"); a("s_cmp_ge_u32 s40, 27"); a("s_cselect_b64 s[42:43], s[42:43], -1")
    a("v_lshl_add_u64 v[36:37], v[36:37], 0, v[34:35]")
    a("s_mov_b64 exec, s[42:43]")
    for t in range(10):
        a.vmem(f"global_load_dwordx4 {vr(64+4*t)}, v[36:37], off {pol}", f"A{t}")
        if t < 9: a("v_lshl_add_u64 v[36:37], v[36:37], 0, v[38:39]")
    a("s_mov_b64 exec, -1")
    a.vmem("global_load_dwordx4 v[16:19], v44, s[4:5]", "x0")
    a.vmem("global_load_dword v20, v44, s[4:5] offset:16", "x1")
    a("s_mov_b64 s[48:49], s[8:9]")
    a("s_waitcnt lgkmcnt(0)")
    a("s_load_dwordx4 s[36:39], s[28:29], 0")
    a("s_lshl_b32 s14, s2, 2"); a("s_add_u32 s14, s14, s34"); a(f"s_sub_u32 s14, s14, {((224+FX) << 2) + 2}")
    if RACE:
        a("s_cmp_eq_u32 s14, 32"); a("s_cbranch_scc0 L_nopl")
        a("v_and_b32 v55, 7, v0"); a("v_lshlrev_b32 v55, 8, v55"); a("v_lshrrev_b32 v54, 3, v0"); a("v_lshl_add_u32 v55, v54, 13, v55"); a(f"v_add_u32 v55, {PL}, v55")
        a("v_mov_b32 v54, 0"); a("s_mov_b64 exec, 0xffff")
        a.vmem("global_store_dword v55, v54, s[28:29] sc1", "pl", "pl")
        a("s_mov_b64 exec, -1")
        a("L_nopl:")
    issue(3)
    a("v_mul_u32_u24 v14, 10240, v1"); a("v_lshl_add_u32 v14, v2, 4, v14")
    a("s_mov_b32 s55, 0x20000"); a("s_mov_b32 s77, %d" % SPIN); a("s_movk_i32 s76, 0x%x" % (0xffff ^ TAGM))
    a("s_cmp_ge_u32 s33, 5"); a("s_cbranch_scc1 L_role1")
    a("s_mov_b32 s64, 0")
    a("s_mov_b64 s[52:53], s[12:13]"); a("s_mov_b32 s54, %d" % (4096*1280))
    a("s_lshl_b32 s66, s32, 2"); a("s_add_u32 s66, s66, s34"); a("s_mul_i32 s66, s66, %d" % (32*1280))
    a("s_mov_b32 s65, s33")
    a("s_branch L_role2")
    a("L_role1:")
    a("s_mov_b64 s[52:53], s[20:21]"); a("s_mov_b32 s54, 0"); a("s_mov_b32 s64, 3")
    a("s_mov_b32 s65, 0"); a("s_mov_b32 s66, 0")
    a("s_cmp_ge_u32 s40, 27"); a("s_cbranch_scc1 L_role2")
    a("s_mov_b32 s64, 2")
    a("s_sub_u32 s78, s33, 5"); a("s_lshl_b32 s78, s78, 2"); a("s_add_u32 s78, s78, s34")
    a("s_cmp_ge_u32 s78, 10"); a("s_cbranch_scc1 L_role2")
    a("s_lshr_b32 s65, s78, 1")
    a("s_lshl_b32 s66, s40, 1"); a("s_and_b32 s79, s78, 1"); a("s_add_u32 s66, s66, s79"); a("s_mul_i32 s66, s66, %d" % (32*1280))
    a("s_mov_b32 s64, 1"); a("s_mov_b32 s54, %d" % (1728*1280))
    a("L_role2:")
    a("s_lshl_b32 s78, s65, 8"); a("s_add_u32 s66, s66, s78"); a("s_add_u32 s67, s66, 5120")
    a("s_mov_b64 s[56:57], s[24:25]"); a("s_movk_i32 s58, 2560"); a("s_mov_b32 s59, 0x20000")
    a("s_sub_u32 s15, 7, s33"); a("s_mul_i32 s15, s15, 3"); a("s_add_u32 s15, s15, s34"); a("s_sub_u32 s15, s15, 1")
    a("s_cmp_eq_u32 s34, 0"); a("s_cselect_b32 s15, 63, s15")
    a("s_and_b32 s78, s32, 7"); a(f"s_cmp_eq_u32 s78, {FX}"); a("s_cselect_b32 s15, s15, 63")
    issue(3)
    a("s_mov_b32 s31, 0")
    a("v_and_b32 v8, 3, v2"); a("v_lshlrev_b32 v8, 4, v8")
    a("v_mov_b32 v10, 0xffff"); a("v_mov_b32 v11, 0")
    a("v_lshlrev_b64 v[10:11], v8, v[10:11]")
    a("s_mov_b32 vcc_lo, 0x0f0f0f0f"); a("s_mov_b32 vcc_hi, vcc_lo")
    a("v_cndmask_b32 v4, 0, v10, vcc"); a("v_cndmask_b32 v5, 0, v11, vcc")
    a("v_xor_b32 v6, v4, v10"); a("v_xor_b32 v7, v5, v11")
    a("v_lshrrev_b32 v15, 1, v1"); a("v_lshlrev_b32 v15, 9, v15"); a("v_lshl_add_u32 v15, v2, 5, v15")
    a("v_and_b32 v8, 1, v1"); a("v_lshl_add_u32 v15, v8, 4, v15")
    a("s_mov_b32 s68, 0x000f000f"); a("s_mov_b32 s69, s68")
    for t in range(1, 4): a(f"s_lshl_b64 s[{68+2*t}:{69+2*t}], s[68:69], {4*t}")
    a("s_mov_b32 s78, 0x01000100"); a("s_mov_b32 s79, 0x03020302")
    a("s_lshl_b32 s35, s34, 10"); a("v_lshl_add_u32 v47, v0, 4, s35")
    a("v_mov_b32 v52, 0"); a("v_mov_b32 v53, 0"); a("s_lshl_b32 s35, s34, 3"); a("v_mov_b32 v54, s35")
    a(f"ds_write_b64 v54, v[52:53] offset:{LML}")
    while pos[0] < PRE + KF: issue()
    a.wait("x1")
    stamp(2)
    for t in range(11):
        if t < 10:
            A = 56 + 4*(t % 2)
            a(f"v_perm_b32 v21, v{16+t//2}, v{16+t//2}, {'s79' if t % 2 else 's78'}")
            for q in range(4): a(f"v_and_b32 v{A+q}, v21, v{4+q}")
        if t > 0: a(f"v_mfma_f32_16x16x32_bf16 {vr(32)}, {vr(56+4*((t-1)%2))}, {vr(64+4*(t-1))}, {'0' if t == 1 else vr(32)}")
    issue()
    a(f"ds_write_b128 v47, {vr(32)}")
    a("s_waitcnt lgkmcnt(0)"); a("s_barrier")
    for i in range(4):
        a(f"s_add_u32 s{36+i}, s{36+i}, 1"); a(f"s_andn2_b32 s{60+i}, s{36+i}, s76"); a(f"v_mov_b32 v{8+i}, s{60+i}")
    a("s_getreg_b32 s30, hwreg(HW_REG_XCC_ID, 0, 4)")
    a("s_lshl_b32 s35, s39, 4"); a("s_or_b32 s30, s30, s35"); a("s_andn2_b32 s30, s30, s76")
    a("s_lshl_b32 s35, s32, 3"); a("s_add_u32 s35, s35, s33"); a("s_lshl_b32 s35, s35, 10"); a(f"s_add_u32 s35, s35, {AP}")
    a("v_add_u32 v36, s35, v15")
    a("s_cmp_eq_u32 s34, 1"); a("s_cbranch_scc0 L_noApub")
    a("v_lshlrev_b32 v3, 4, v0")
    for p, o in enumerate((0, 2048, 3072)): a(f"ds_read_b128 {vr(16+4*p)}, v3 offset:{o}")
    a("s_mov_b32 vcc_lo, 0xff00ff00"); a("s_mov_b32 vcc_hi, vcc_lo"); a("v_mov_b32 v3, s30"); a("v_cndmask_b32 v3, v3, v11, vcc")
    a("s_waitcnt lgkmcnt(0)")
    add4(32, 16, 32); add4(20, 20, 24); add4(32, 32, 20)
    settag(32, 3)
    a("s_mov_b64 exec, s[42:43]")
    a.vmem(f"global_store_dwordx4 v36, {vr(32)}, s[28:29]", "Apub", "qw")
    a("s_mov_b64 exec, -1")
    a("L_noApub:")
    stamp(3)
    issue(2)
    a("s_lshl_b32 s35, s32, 13"); a(f"s_add_u32 s35, s35, {AP+256}")
    a("s_and_b32 s78, s34, 1"); a("s_lshl_b32 s78, s78, 7"); a("s_add_u32 s78, s78, s35")
    a("v_and_b32 v40, 3, v2"); a("v_lshlrev_b32 v38, 11, v40"); a("v_lshrrev_b32 v16, 3, v2"); a("v_lshl_add_u32 v38, v16, 9, v38"); a("v_lshl_add_u32 v38, v1, 5, v38")
    a("v_and_b32 v16, 4, v2"); a("v_lshl_add_u32 v38, v16, 2, v38"); a("v_add_u32 v38, s78, v38")
    a("s_lshr_b32 s78, s33, 2"); a("s_lshl_b32 s78, s78, 9"); a("s_add_u32 s35, s35, s78"); a(f"s_addk_i32 s35, {2048-256}")
    a("v_lshl_add_u32 v3, v1, 6, v2"); a("v_lshl_add_u32 v3, v3, 4, s35")
    a("v_lshrrev_b32 v16, 5, v0"); a("v_and_b32 v17, 31, v0"); a("v_lshlrev_b32 v39, 2, v16"); a("v_lshl_add_u32 v39, v17, 3, v39")
    a("v_lshlrev_b32 v40, 6, v40"); a("v_lshl_add_u32 v40, v1, 4, v40")
    assert pos[0] <= stream.index(("q", 0))
    tgt = stream.index(("q", 0)) + DQ
    XR, WR = (48, 52, 16), (56, 60, 20)
    a("s_cmp_eq_u32 s14, 0"); a("s_cbranch_scc0 L_ng1")
    a("v_and_b32 v41, 31, v0"); a("v_lshlrev_b32 v41, 4, v41"); a("v_lshrrev_b32 v42, 5, v0"); a("v_mul_u32_u24 v42, 1280, v42"); a("v_add_u32 v42, v42, v41")
    for k in range(8): a(f"v_mov_b32 v{16+k}, 0")
    for k in range(3):
        if k == 2: a("s_mov_b32 exec_lo, 0xffff"); a("s_mov_b32 exec_hi, exec_lo")
        a.vmem(f"global_load_dwordx4 {vr(XR[k])}, v42, s[4:5] offset:{512*k}", "fx", "gc")
        a.vmem(f"global_load_dwordx4 {vr(WR[k])}, v41, s[22:23] offset:{512*k}", "fx", "gc")
    a("s_mov_b64 exec, -1")
    a("L_ng1:")
    while pos[0] < GPOS + 8 and pos[0] <= tgt and can_issue(): issue()
    a("s_cmp_eq_u32 s14, 0"); a("s_cbranch_scc0 L_ng2")
    a("s_mov_b32 s41, 0")
    if RACE:
        RN, SH = RACE
        a(f"s_mov_b32 s78, {PL}"); a(f"s_mov_b32 s79, {PL+0x2000}")
        for sh in range(SH):
            A = [16+k for k in range(RN)]; B = [6+k for k in range(RN)]
            for r in A + B: a(f"s_mov_b32 s{r}, -1")
            a("s_mov_b32 s35, 48")
            for k in range(RN):
                pair = [(A[k], "s78"), (B[k], "s79")]
                if (k + sh) % 2: pair.reverse()
                for r, o in pair: a(f"s_load_dword s{r}, s[28:29], {o}")
                a("s_addk_i32 s78, 256"); a("s_addk_i32 s79, 256")
            a(f"L_rc{sh}:")
            a("s_mov_b64 s[10:11], 0")
            for k in range(RN):
                chk = [(A[k], "s10"), (B[k], "s11")]
                if k % 2: chk.reverse()
                for r, c in chk: a(f"s_cmp_eq_u32 s{r}, -1"); a(f"s_addc_u32 {c}, {c}, 0")
            a("s_add_u32 s41, s41, s10"); a("s_sub_u32 s41, s41, s11")
            a("s_sub_u32 s35, s35, 1"); a(f"s_cbranch_scc1 L_rd{sh}")
            a("s_or_b32 s10, s10, s11"); a(f"s_cbranch_scc1 L_rc{sh}")
            a(f"L_rd{sh}:"); a("s_waitcnt lgkmcnt(0)")
        a("s_cmp_gt_i32 s41, 0"); a("s_cselect_b32 s41, 1, 0")
    a.wait("fx", "gc")
    first = True
    for xb, wb in zip(XR, WR):
        for k in range(4):
            x, w = xb+k, wb+k
            a(f"v_lshlrev_b32 v43, 16, v{x}"); a(f"v_lshlrev_b32 v41, 16, v{w}"); a("v_mul_f32 v43, v43, v41")
            a(f"v_and_b32 v{x}, 0xffff0000, v{x}"); a(f"v_and_b32 v{w}, 0xffff0000, v{w}"); a(f"v_mul_f32 v41, v{x}, v{w}")
            rnd2(43, 41, x)
            if first: a("v_add_f32 v42, v43, v41")
            else: a("v_add_f32 v42, v42, v43"); a("v_add_f32 v42, v42, v41")
            first = False
    for m in ("quad_perm:[1,0,3,2]", "quad_perm:[2,3,0,1]", "row_half_mirror", "row_mirror"):
        a(f"v_add_f32_dpp v42, v42, v42 {m} {DPPF}")
    a("v_add_f32_dpp v42, v42, v42 row_bcast:15 row_mask:0xa bank_mask:0xf")
    a("v_cvt_pk_bf16_f32 v42, v42, v42"); a("v_lshlrev_b32 v42, 16, v42")
    a(f"v_mul_f32 v42, 0x{f2u(-LOG2E):x}, v42"); a("v_exp_f32 v42, v42"); a("v_add_f32 v42, 1.0, v42"); a("v_rcp_f32 v42, v42")
    a("v_cvt_pk_bf16_f32 v42, v42, v42"); a("v_lshlrev_b32 v42, 16, v42")
    a("v_sub_f32 v43, 1.0, v42"); a("v_cvt_pk_bf16_f32 v48, v42, v43")
    a("s_lshl_b32 s35, s38, 1"); a("s_or_b32 s35, s35, s41"); a("v_mov_b32 v49, s35")
    a("v_lshrrev_b32 v52, 5, v0"); a("v_lshlrev_b32 v52, 3, v52"); a(f"v_add_u32 v52, {GG}, v52")
    a("s_brev_b32 exec_lo, 1"); a("s_mov_b32 exec_hi, exec_lo")
    a.vmem("global_store_dwordx2 v52, v[48:49], s[28:29] sc1", "gpub", "gc")
    a("s_mov_b64 exec, -1")
    a("L_ng2:")
    while pos[0] <= tgt and can_issue(): issue()
    a("s_cmp_eq_u32 s34, 1"); a("s_cbranch_scc0 L_noq")
    a.wait("q", "qw")
    a("L_qchk:")
    untag(16, 16, 8, 37, t3="s30")
    a("s_cbranch_vccnz L_qslow")
    a("L_qok:")
    slow.extend(["L_qslow:", "s_bitcmp1_b32 s31, 1", "s_cbranch_scc1 L_qs1", "s_bitset1_b32 s31, 1", "s_mov_b64 exec, s[42:43]",
                 f"global_store_dwordx4 v36, {vr(32)}, s[28:29] sc1", "s_mov_b64 exec, -1", "L_qs1:"])
    slow.extend([f"v_and_b32 v{19+4*i}, -16, v{19+4*i}" for i in range(2)])
    slow.extend(["v_or_b32 v37, v16, v17"] + [f"v_or3_b32 v37, v37, v{16+i}, v{17+i}" for i in range(2, 8, 2)])
    slow.extend([f"v_and_b32 v37, {TAGM}, v37", "v_cmp_ne_u32 vcc, 0, v37", "s_cbranch_vccnz L_qretry", "s_bitset1_b32 s31, 0", "s_branch L_qok"])
    retry("q", qloads)
    add4(16, 16, 20)
    a("v_mov_b32 v20, s31"); a("v_mov_b32 v21, 0")
    a("v_permlane32_swap_b32 v16, v18"); a("v_permlane32_swap_b32 v17, v19")
    a("v_add_f32 v16, v16, v18"); a("v_add_f32 v17, v17, v19")
    a("v_cvt_pk_bf16_f32 v16, v16, v17")
    a(f"ds_write_b32 v21, v20 offset:{LQ+256}")
    a(f"ds_write_b32 v39, v16 offset:{LQ}")
    a("s_waitcnt lgkmcnt(0)")
    a("L_noq:")
    a("s_barrier")
    stamp(4)
    a("v_mov_b32 v21, 0")
    a(f"ds_read_b128 v[24:27], v40 offset:{LQ}")
    a(f"ds_read_b32 v20, v21 offset:{LQ+256}")
    issue()
    a("s_waitcnt lgkmcnt(0)")
    a("v_readfirstlane_b32 s31, v20")
    a("s_cmp_eq_u32 s64, 2"); a("s_cbranch_scc0 L_noh")
    a.wait("gup", "hc")
    a("L_gchk:")
    untag(48, 48, 8, 37)
    a("s_cbranch_vccnz L_gretry")
    retry("g", guloads)
    for qpm in ("[1,0,3,2]", "[2,3,0,1]"):
        for k in range(8): a(f"v_add_f32_dpp v{48+k}, v{48+k}, v{48+k} quad_perm:{qpm} {DPPF}")
    rnd2(48, 49, 56); rnd2(50, 51, 57); rnd2(52, 53, 58); rnd2(54, 55, 59)
    c1 = -2*math.sqrt(2/math.pi)*LOG2E; c2 = c1*0.044715
    a(f"v_mov_b32 v60, 0x{f2u(c1):x}"); a(f"s_mov_b32 s35, 0x{f2u(c2):x}")
    for k in range(4): a(f"v_mul_f32 v{56+k}, v{48+k}, v{48+k}")
    for k in range(4): a(f"v_fma_f32 v{56+k}, v{56+k}, s35, v60")
    for k in range(4): a(f"v_mul_f32 v{56+k}, v{56+k}, v{48+k}")
    for k in range(4): a(f"v_exp_f32 v{56+k}, v{56+k}")
    for k in range(4): a(f"v_add_f32 v{56+k}, 1.0, v{56+k}")
    for k in range(4): a(f"v_rcp_f32 v{56+k}, v{56+k}")
    for k in range(4): a(f"v_mul_f32 v{48+k}, v{48+k}, v{56+k}")
    rnd2(48, 49, 56); rnd2(50, 51, 57)
    for k in range(4): a(f"v_mul_f32 v{48+k}, v{48+k}, v{52+k}")
    rnd2(48, 49, 56); rnd2(50, 51, 57)
    for k in range(4): a(f"v_or_b32 v{48+k}, v{48+k}, v{8+k}")
    a("s_lshl_b32 s35, s32, 1"); a("s_and_b32 s78, s34, 1"); a("s_add_u32 s35, s35, s78"); a("s_lshl_b32 s35, s35, 8"); a(f"s_add_u32 s35, s35, {HP}")
    a("v_and_b32 v52, 8, v2"); a("v_lshlrev_b32 v52, 4, v52"); a("v_and_b32 v53, 4, v2"); a("v_lshl_add_u32 v52, v53, 2, v52"); a("v_lshl_add_u32 v52, v1, 5, v52")
    a("v_add_u32 v52, s35, v52")
    a("s_mov_b32 exec_lo, 0x11111111"); a("s_mov_b32 exec_hi, exec_lo")
    pub("hpub", "global_store_dwordx4 v52, v[48:51], s[28:29]", "hc")
    a("s_mov_b64 exec, -1")
    a("L_noh:")
    QB = (32, 36, 40, 60)
    for t in range(4):
        for i in range(4): a(f"v_cndmask_b32_e64 v{QB[t]+i}, 0, v{24+i}, s[{68+2*t}:{69+2*t}]")
    issue()
    def qk_mfma(p):
        L = []
        for t in range(4):
            for uu in range(2):
                u = 2*p + uu; d = 16 + 8*(p % 2) + 4*uu
                L.append(f"v_mfma_f32_16x16x32_bf16 {vr(d)}, {ar(16*u+4*t)}, {vr(QB[t])}, {'0' if t == 0 else vr(d)}")
        return L
    def qk_red(p):
        L = []
        for jj in range(4):
            for uu in range(2):
                u = 2*p + uu; d = 16 + 8*(p % 2) + 4*uu
                if jj == 0: L.append(f"v_mov_b32_dpp v{48+u}, v{d} quad_perm:[0,0,0,0] {DPPF}")
                else: L.append(f"v_add_f32_dpp v{48+u}, v{d+jj}, v{48+u} quad_perm:[{jj},{jj},{jj},{jj}] {DPPF}")
        u = 48 + 2*p
        L += [f"v_cvt_pk_bf16_f32 v56, v{u}, v{u+1}", f"v_lshlrev_b32 v{u}, 16, v56", f"v_and_b32 v{u+1}, 0xffff0000, v56",
              f"v_mul_f32 v{u}, 0x{f2u(128**-0.5):x}, v{u}", f"v_mul_f32 v{u+1}, 0x{f2u(128**-0.5):x}, v{u+1}",
              f"v_cvt_pk_bf16_f32 v56, v{u}, v{u+1}", f"v_lshlrev_b32 v{u}, 16, v56", f"v_and_b32 v{u+1}, 0xffff0000, v56"]
        return L
    for p in range(5):
        M = qk_mfma(p) if p < 4 else []
        R = qk_red(p-1) if p > 0 else []
        if p < 4:
            ahead(("K", 8*p+7)); a.wait(f"K{8*p+7}")
        for m in M[:4]: a(m)
        M = M[4:]
        while M or R:
            for _ in range(4):
                if R: a(R.pop(0))
            if M: a(M.pop(0))
        kfree[0] = min(32, 8*(p+1))
        issue()
    a("v_max3_f32 v16, v48, v49, v50"); a("v_max3_f32 v17, v51, v52, v53"); a("v_max3_f32 v16, v16, v54, v55"); a("v_max_f32 v16, v16, v17")
    a(f"v_max_f32_dpp v16, v16, v16 row_ror:8 {DPPF}"); a(f"v_max_f32_dpp v16, v16, v16 row_ror:4 {DPPF}")
    a("v_max_f32_dpp v16, v16, v16 row_bcast:15 row_mask:0xa bank_mask:0xf")
    a("v_max_f32_dpp v16, v16, v16 row_bcast:31 row_mask:0xc bank_mask:0xf")
    a(f"v_mov_b32 v17, 0x{f2u(LOG2E):x}")
    a("v_mul_f32 v16, v17, v16")
    a("v_readlane_b32 s35, v16, 63")
    for u in range(8): a(f"v_fma_f32 v{48+u}, v{48+u}, v17, -s35")
    for u in range(8): a(f"v_exp_f32 v{48+u}, v{48+u}")
    a("v_add_f32 v18, v48, v49"); a("v_add_f32 v19, v50, v51"); a("v_add_f32 v20, v52, v53"); a("v_add_f32 v21, v54, v55")
    a("v_add_f32 v18, v18, v19"); a("v_add_f32 v20, v20, v21"); a("v_add_f32 v17, v18, v20")
    issue()
    for u in range(8): a(f"v_cvt_pk_bf16_f32 v{48+u}, v{48+u}, v{48+u}")
    a(f"v_add_f32_dpp v17, v17, v17 row_ror:8 {DPPF}"); a(f"v_add_f32_dpp v17, v17, v17 row_ror:4 {DPPF}")
    a("v_add_f32_dpp v17, v17, v17 row_bcast:15 row_mask:0xa bank_mask:0xf")
    a("v_add_f32_dpp v17, v17, v17 row_bcast:31 row_mask:0xc bank_mask:0xf")
    a("s_lshl_b32 s35, s34, 3"); a("v_mov_b32 v18, s35")
    a("s_mov_b32 exec_lo, 0"); a("s_brev_b32 exec_hi, 1")
    a(f"ds_write_b64 v18, v[16:17] offset:{LML}")
    a("s_mov_b64 exec, -1")
    stamp(5)
    a("v_lshrrev_b32 v44, 3, v2"); a("v_and_b32 v45, 3, v2"); a("v_lshl_add_u32 v44, v44, 2, v45")
    a("s_lshl_b32 s35, s32, 13"); a(f"s_add_u32 s35, s35, {OP}"); a("v_lshl_add_u32 v44, v44, 10, s35")
    a("v_and_b32 v46, 4, v2"); a("v_lshlrev_b32 v46, 2, v46"); a("v_lshl_add_u32 v46, v1, 5, v46"); a("s_lshl_b32 s78, s34, 7"); a("v_add3_u32 v45, v46, s78, v44")
    a("v_add_u32 v44, 512, v44")
    a("s_cmp_eq_u32 s64, 1"); a("s_cbranch_scc0 L_noha")
    a("s_lshl_b32 s78, s32, 1"); a("s_and_b32 s79, s34, 1"); a("s_add_u32 s78, s78, s79"); a("s_lshl_b32 s78, s78, 8"); a(f"s_add_u32 s78, s78, {HP}")
    a("v_and_b32 v44, 8, v2"); a("v_lshlrev_b32 v44, 4, v44"); a("v_add3_u32 v44, v44, s78, v46")
    a("L_noha:")
    a("s_lshl_b32 s78, s33, 10"); a("s_add_u32 s35, s35, s78"); a("v_add_u32 v46, s35, v15")
    a("s_lshl_b32 s35, s65, 16"); a(f"s_add_u32 s35, s35, {YY + YP}")
    a("s_lshr_b32 s79, s32, 3"); a("s_lshl_b32 s79, s79, 14"); a("s_add_u32 s35, s35, s79")
    a("s_and_b32 s79, s32, 7"); a("s_lshl_b32 s79, s79, 10"); a("s_add_u32 s35, s35, s79")
    a("s_and_b32 s79, s32, 14"); a("s_lshl_b32 s79, s79, 6"); a("s_add_u32 s35, s35, s79")
    a("v_xor_b32 v3, s35, v15")
    a("s_lshl_b32 s35, s32, 3"); a("s_add_u32 s35, s35, s65"); a("s_lshl_b32 s35, s35, 10"); a(f"s_add_u32 s35, s35, {YF}")
    a("v_add_u32 v39, s35, v15")
    a("s_mov_b64 s[20:21], s[28:29]"); a("s_mov_b32 s23, 0x20000")
    a("s_cmp_lt_u32 s40, 27"); a("s_cselect_b32 s22, 0x200000, 0"); a("s_cselect_b64 s[24:25], s[60:61], 0"); a("s_cselect_b64 s[26:27], s[62:63], 0")
    a("s_cmp_eq_u32 s34, 0"); a("s_cselect_b32 s22, s22, 0")
    a("v_lshrrev_b32 v38, 5, v0"); a("v_lshlrev_b32 v38, 3, v38"); a(f"v_add_u32 v38, {GG}, v38"); a("s_lshl_b32 s41, s38, 1")
    for i in range(32):
        u, t = i >> 2, i & 3
        A = 56 + 4*(i % 2)
        for q in range(4): a(f"v_and_b32_dpp v{A+q}, v{48+u}, v{4+q} row_newbcast:{4*t} {DPPF}")
        if i in sync: a("s_barrier")
        ahead(("V", i))
        if i == 31:
            while can_issue(): issue()
        if i == ML_AT:
            a("s_cmp_lg_u32 s34, 0"); a("s_cbranch_scc1 L_noml")
            a("v_mov_b32 v16, 0")
            a("L_mlw:")
            a(f"ds_read_b128 v[20:23], v16 offset:{LML}"); a(f"ds_read_b128 v[24:27], v16 offset:{LML+16}")
            a("s_sub_u32 s77, s77, 1"); a("s_cbranch_scc1 L_exit")
            a("s_waitcnt lgkmcnt(0)")
            a("v_min3_u32 v17, v23, v25, v27"); a("v_cmp_eq_u32 vcc, 0, v17"); a("s_cbranch_vccnz L_mlw")
            a("v_max3_f32 v16, v20, v22, v24"); a("v_max_f32 v16, v16, v26")
            for w in range(4): a(f"v_sub_f32 v{40+w}, v{20+2*w}, v16")
            for w in range(4): a(f"v_exp_f32 v{40+w}, v{40+w}")
            a("v_mul_f32 v18, v40, v21"); a("v_fmac_f32 v18, v41, v23"); a("v_fmac_f32 v18, v42, v25"); a("v_fmac_f32 v18, v43, v27")
            a("v_mov_b32 v17, s36"); a("v_mov_b32 v19, s37")
            a("s_mov_b64 exec, 1")
            pub("mlpub", "global_store_dwordx4 v46, v[16:19], s[28:29] offset:512", "lead")
            a("s_mov_b64 exec, -1")
            a("L_noml:")
        a.wait(f"V{i}")
        if i == 31: stamp(6)
        a(f"v_mfma_f32_16x16x32_bf16 {vr(32)}, {vr(A)}, {vreg(i)}, {'0' if i == 0 else vr(32)}")
    a("s_cmp_lg_u32 s34, 0")
    a(f"ds_write_b128 v47, {vr(32)}")
    a("s_waitcnt lgkmcnt(0)"); a("s_barrier")
    a("s_cbranch_scc1 L_noopub")
    for p in range(1, 4): a(f"ds_read_b128 {vr(12+4*p)}, v47 offset:{p*1024}")
    mul4(32, 40, 32)
    a("s_mov_b32 exec_hi, 0")
    a("s_waitcnt lgkmcnt(0)")
    for p in range(1, 4): fma4(32, 40+p, 12+4*p, 32)
    settag(32)
    pub("opub", f"global_store_dwordx4 v46, {vr(32)}, s[28:29]", "lead")
    a("s_mov_b32 exec_hi, -1")
    a("L_noopub:")
    stamp(7)
    a("s_cmp_eq_u32 s64, 0"); a("s_cbranch_scc0 L_notwo")
    oload = "global_load_dwordx4 v[16:19], v45, s[28:29] sc1"
    a("s_barrier")
    if YT == 2: a.vmem("buffer_load_dword v52, v39, s[20:23], 0 offen sc1", "yt", "wo")
    a.vmem(oload, "op", "wo")
    a.wait("ml", "wo")
    a("L_mchk:")
    a("v_xor_b32 v29, s36, v29"); a("v_xor_b32 v31, s37, v31"); a("v_or_b32 v29, v29, v31"); a("v_cmp_ne_u32 vcc, 0, v29")
    a("s_cbranch_vccnz L_mretry")
    retry("m", [mlload])
    a(f"v_max_f32_dpp v29, v28, v28 quad_perm:[1,0,3,2] {DPPF}"); a(f"v_max_f32_dpp v29, v29, v29 quad_perm:[2,3,0,1] {DPPF}")
    a("v_sub_f32 v28, v28, v29"); a("v_exp_f32 v28, v28"); a("v_mul_f32 v30, v30, v28")
    a(f"v_add_f32_dpp v30, v30, v30 quad_perm:[1,0,3,2] {DPPF}"); a(f"v_add_f32_dpp v30, v30, v30 quad_perm:[2,3,0,1] {DPPF}")
    a("v_rcp_f32 v30, v30"); a("v_mul_f32 v28, v28, v30")
    def gcheck(name):
        a(f"L_{name}chk:")
        a("v_xor_b32 v37, s41, v37"); a("v_cmp_lt_u32 vcc, 1, v37"); a(f"s_cbranch_vccnz L_{name}retry")
        retry(name, [gload])
    gcheck("ga")
    a("v_lshlrev_b32 v36, 16, v36"); a("v_lshlrev_b32 v37, 13, v37"); a("v_xor_b32 v3, v3, v37")
    a("s_branch L_ochk")
    a("L_oloop:")
    a(oload)
    a("s_sub_u32 s77, s77, 1"); a("s_cbranch_scc1 L_exit")
    a("L_ochk:")
    a("s_waitcnt vmcnt(0)")
    if tailst: stamp(1)
    untag(16, 16, 4, 20)
    a("s_cbranch_vccnz L_oloop")
    stamp(8)
    yfload = "buffer_load_dwordx4 v[52:55], v39, s[20:23], 0 offen sc1"
    a(yfload)
    mul4(16, 28, 16)
    for qpm in ("[1,0,3,2]", "[2,3,0,1]"):
        for k in range(4): a(f"v_add_f32_dpp v{16+k}, v{16+k}, v{16+k} quad_perm:{qpm} {DPPF}")
    def cstage(src, waits):
        for k in range(4): a(f"v_cvt_pk_bf16_f32 v{48+k}, v{src+k}, v{src+k}")
        def cm(t):
            if waits: a(f"s_waitcnt vmcnt({7-t})")
            a(f"v_mfma_f32_16x16x32_bf16 {vr(32)}, {vr(64+4*t)}, {ar(64+4*t)}, {'0' if t == 0 else vr(32)}")
        for t in range(8):
            A = 64 + 4*t; hp = t >> 2; jj = t & 3
            for q in range(4):
                if (q >> 1) == hp: a(f"v_and_b32 v{A+q}, v{48+jj}, v{4+q}")
                else: a(f"v_and_b32_dpp v{A+q}, v{48+jj}, v{4+q} row_half_mirror {DPPF}")
            if t > 0 and not waits: cm(t-1)
        for t in (range(8) if waits else (7,)): cm(t)
    cstage(16, False)
    def yfcheck(A):
        for i in range(4): A(f"v_xor_b32 v{52+i}, s{24+i}, v{52+i}")
        A("v_or_b32 v56, v52, v53"); A("v_or3_b32 v56, v56, v54, v55"); A(f"v_and_b32 v56, {TAGM}, v56"); A("v_cmp_ne_u32 vcc, 0, v56")
    a("s_cmp_lg_u32 s34, 0")
    a(f"ds_write_b128 v47, {vr(32)} offset:4096")
    a("s_waitcnt lgkmcnt(0)"); a("s_barrier")
    a("s_cbranch_scc1 L_final")
    for p in range(1, 4): a(f"ds_read_b128 {vr(12+4*p)}, v47 offset:{4096+p*1024}")
    a("s_waitcnt vmcnt(0)")
    a("L_yfchk:")
    yfcheck(a)
    a("s_cbranch_vccnz L_yfretry")
    retry("yf", [yfload])
    a("s_waitcnt lgkmcnt(0)")
    add4(32, 32, 16); add4(20, 20, 24); add4(32, 32, 20); fma4(32, 36, 32, 52)
    settag(32)
    a(f"global_store_dwordx4 v3, {vr(32)}, s[28:29] sc1")
    a(END)
    a("L_notwo:")
    a("s_cmp_eq_u32 s64, 1"); a("s_cbranch_scc1 L_ffn")
    a("s_cmp_lt_u32 s15, 20"); a("s_cbranch_scc0 L_end")
    a("s_waitcnt vmcnt(0)")
    gcheck("gc")
    a("v_lshlrev_b32 v37, 13, v37")
    a("L_final:")
    a("s_cmp_lt_u32 s15, 20"); a("s_cbranch_scc0 L_end")
    if tailst: stamp(5)
    a("s_lshr_b32 s78, s32, 4")
    a("s_lshl_b32 s35, s15, 1"); a("s_cmp_ge_u32 s15, 10"); a("s_cselect_b32 s79, 19, 0"); a("s_sub_u32 s35, s35, s79")
    a("s_lshr_b32 s79, s32, 3"); a("s_mul_i32 s65, s79, 20"); a("s_add_u32 s65, s65, s35")
    a("s_mul_i32 s35, s78, 40"); a("s_sub_u32 s35, s65, s35"); a("s_lshr_b32 s67, s35, 3"); a("s_lshl_b32 s67, s67, 16"); a(f"s_add_u32 s67, s67, {YY + YP}")
    a("s_and_b32 s35, s35, 7"); a("s_lshl_b32 s35, s35, 6"); a("s_or_b32 s67, s67, s35"); a("s_lshl_b32 s35, s78, 9"); a("s_or_b32 s67, s67, s35")
    a("v_and_b32 v44, 3, v0"); a("v_lshrrev_b32 v45, 2, v0")
    a("v_and_b32 v48, 7, v45"); a("v_lshlrev_b32 v48, 10, v48"); a("v_lshl_add_u32 v48, v44, 4, v48")
    a("v_lshrrev_b32 v49, 3, v45"); a("v_lshl_add_u32 v48, v49, 14, v48")
    a("v_and_b32 v49, 14, v45"); a("v_lshl_add_u32 v48, v49, 6, v48")
    a("v_xor_b32 v48, s67, v48"); a("v_xor_b32 v48, v37, v48"); a("v_add_u32 v49, 0x8000, v48")
    a("v_lshl_add_u32 v44, v44, 2, v1"); a("v_lshlrev_b32 v44, 1, v44"); a("s_lshl_b32 s66, s65, 5")
    a("buffer_load_ushort v45, v44, s[56:59], s66 offen")
    if tailst: stamp(3)
    def sweep2(k):
        for t in (0, 1): a(f"global_load_dwordx4 {vr(64+8*k+4*t)}, v{48+t}, s[28:29] sc1")
    for k in range(FP2-1): sweep2(k)
    a("L_yloop2:")
    for k in range(FP2):
        sweep2((k+FP2-1) % FP2)
        if k == 0: a("s_sub_u32 s77, s77, 1"); a("s_cbranch_scc1 L_exit")
        a(f"s_waitcnt vmcnt({(FP2-1)*2})")
        untag(16, 64+8*k, 8, 32)
        a("s_and_b64 exec, exec, vcc")
        a("s_cbranch_scc1 L_yloop2" if k == FP2-1 else "s_cbranch_scc0 L_ydone")
    a("L_ydone:")
    a("s_mov_b64 exec, -1")
    if tailst: stamp(2)
    add4(16, 16, 20)
    a("v_permlane32_swap_b32 v16, v18"); a("v_permlane32_swap_b32 v17, v19")
    if pk: a("v_pk_add_f32 v[16:17], v[16:17], v[18:19]")
    else: a("v_add_f32 v16, v16, v18"); a("v_add_f32 v17, v17, v19")
    a("v_permlane16_swap_b32 v16, v17")
    a("v_add_f32 v16, v16, v17")
    a("s_cmp_lg_u32 s65, 0")
    for m in ("row_ror:8", "row_ror:4"): a(f"v_add_f32_dpp v16, v16, v16 {m} {DPPF}")
    a("s_mov_b64 exec, s[68:69]")
    a("v_cvt_pk_bf16_f32 v16, v16, v16")
    a("buffer_store_short v16, v44, s[56:59], s66 offen")
    if stamps: a("s_mov_b32 s64, 3")
    a("s_cbranch_scc0 L_epoch")
    a("L_end:")
    if stamps:
        a("v_readfirstlane_b32 s14, v37")
        stamp(9)
        a("s_mov_b64 exec, 1")
        a("s_lshl_b32 s3, s2, 2"); a("s_add_u32 s3, s3, s34"); a("s_lshl_b32 s3, s3, 6"); a("s_add_u32 s3, s3, 0x10000000")
        a("v_mov_b32 v3, s3")
        a("s_getreg_b32 s35, hwreg(HW_REG_XCC_ID)")
        a("s_waitcnt lgkmcnt(0)")
        a("s_getreg_b32 s78, hwreg(HW_REG_HW_ID)")
        vals = [f"s{80+2*k}" for k in range(10)] + ["s35", "s64", "s78", "s77", "s31", "s14"]
        for q in range(4):
            for k in range(4): a(f"v_mov_b32 v{48+4*q+k}, {vals[4*q+k]}")
            a(f"global_store_dwordx4 v3, {vr(48+4*q)}, s[28:29] offset:{16*q}")
    a("L_exit:")
    a("s_endpgm")
    a("L_epoch:")
    a("s_mov_b64 exec, 1")
    for k in range(4): a(f"v_mov_b32 v{28+k}, s{36+k}")
    a("v_mov_b32 v24, 0")
    a("global_store_dwordx4 v24, v[28:31], s[28:29]")
    a(END)
    a("L_ffn:")
    a.wait("ml")
    a("L_hchk:")
    untag(28, 28, 4, 20)
    a("s_cbranch_vccnz L_hretry")
    retry("h", [mlload])
    gcheck("gf")
    a("v_and_b32 v36, 0xffff0000, v36")
    cstage(28, True)
    if tailst: stamp(3)
    a("s_bitcmp1_b32 s34, 0")
    a(f"ds_write_b128 v47, {vr(32)} offset:4096")
    a("s_waitcnt lgkmcnt(0)"); a("s_barrier")
    a("s_cbranch_scc1 L_end")
    a(f"ds_read_b128 {vr(20)}, v47 offset:{4096+1024}")
    a("s_waitcnt lgkmcnt(0)")
    add4(32, 32, 20); mul4(32, 36, 32)
    settag(32)
    pub("ypub", f"global_store_dwordx4 v39, {vr(32)}, s[28:29]", "ffn")
    a(END)
    for lab in ("L_noh", "L_ng1", "L_ng2", "L_nogp", "L_noha") + (("L_nopl",) if RACE else ()):
        end = a.L.index(lab + ":")
        b = [i for i, l in enumerate(a.L) if l.startswith("s_cbranch_scc") and l.endswith(" " + lab)][0]
        body = a.L[b+1:end]
        inv = "s_cbranch_scc1" if a.L[b].startswith("s_cbranch_scc0") else "s_cbranch_scc0"
        a.L[b:end] = [f"{inv} {lab}_do"]
        slow[:0] = [f"{lab}_do:"] + body + [f"s_branch {lab}"]
    for l in slow: a(l)
    body, nn = fix_hazards(a.L)
    out = [HEADER.rstrip("\n"), f"; @launch grid=(256,1,1) block=(256,1,1) lds={LDS}",
           '.amdgcn_target "amdgcn-amd-amdhsa--gfx950"', ".text", f".globl {KN}", ".p2align 12"]
    if pad: out.append(f".fill {pad//4}, 4, 0xbf800000")
    out += [".p2align 8", f".type {KN},@function"]
    out += [l if l.endswith(":") else "    " + l for l in body]
    out += ["L_last:", "    s_endpgm",
            '.section .rodata,"a"', ".p2align 6", f".amdhsa_kernel {KN}",
            "  .amdhsa_next_free_vgpr 256", "  .amdhsa_next_free_sgpr 102", "  .amdhsa_accum_offset 128",
            "  .amdhsa_group_segment_fixed_size 0", "  .amdhsa_kernarg_size 104", "  .amdhsa_user_sgpr_count 2",
            "  .amdhsa_user_sgpr_kernarg_segment_ptr 1", "  .amdhsa_system_sgpr_workgroup_id_x 1", ".end_amdhsa_kernel"]
    return "\n".join(out) + "\n", nn
if __name__ == "__main__":
    s, nn = gen()
    open("g11.s", "w").write(s)
    print("nops inserted", nn)
```

```python
import sys, struct, math
from asmlib import Asm, fix_hazards
KN = "gated_mix__sliding_block_cached__geglu_ffn__decode_kernel"
def f2u(x): return struct.unpack("<I", struct.pack("<f", x))[0]
LOG2E = 1.4426950408889634
TAGM = 0x3ff
AP, OP, HP, GG, YF, YY = 0x10000, 0x50000, 0x90000, 0x98000, 0xa0000, 0x140000
PL = 0x130000
LML, LQ, LDS = 8192, 8256, 8704
DPPF = "row_mask:0xf bank_mask:0xf"
HEADER = open("gated_mix__sliding_block_cached__geglu_ffn__decode.s.ref").read().split("; Override launch")[0]

def gen(D=16, qp=26, DQ=12, PRE=12, KF=2, rot=(5,3), pol="nt", SPIN=200000, ML_AT=6, sync=(16,), lights=(21,28,29,30,31), TAT=None,
        FP2=2, YP=0, YT=1, otouch=True, RACE=(4,2), GPOS=22, PREP='st', jit=0, pf=True, pk=True, pad=0, perm=0, stamps=False, lite=False, tailst=False):
    a = Asm()
    lights = sorted(lights); assert len(set(lights)) == 5
    HG, HP2 = lights[1], lights[2]
    remap = tuple(zip([x for x in lights if x < 27], [x for x in range(27, 32) if x not in lights]))
    END = "s_branch L_end" if stamps else "s_endpgm"
    def stamp(k):
        if stamps and not (lite and k not in (0, 6, 9)): a(f"s_memrealtime s[{80+2*k}:{81+2*k}]")
    def vr(b, n=4): return f"v[{b}:{b+n-1}]"
    def ar(b, n=4): return f"a[{b}:{b+n-1}]"
    def untag(dst, src, n, tmp, cc="vcc", t3="s63"):
        for i in range(n): a(f"v_xor_b32 v{dst+i}, {t3 if i%4 == 3 else 's%d' % (60+i%4)}, v{src+i}")
        a(f"v_or_b32 v{tmp}, v{dst}, v{dst+1}")
        for i in range(2, n, 2): a(f"v_or3_b32 v{tmp}, v{tmp}, v{dst+i}, v{dst+i+1}")
        a(f"v_and_b32 v{tmp}, {TAGM}, v{tmp}")
        a(f"v_cmp_ne_u32 {cc}, 0, v{tmp}")
    def settag(dst, t3=11):
        for i in range(4): a(f"v_and_or_b32 v{dst+i}, v{dst+i}, s76, v{8+i if i < 3 else t3}")
    def rnd2(x, y, tmp):
        a(f"v_cvt_pk_bf16_f32 v{tmp}, v{x}, v{y}")
        a(f"v_lshlrev_b32 v{x}, 16, v{tmp}")
        a(f"v_and_b32 v{y}, 0xffff0000, v{tmp}")
    def add4(d, x, y):
        if pk:
            for k in (0, 2): a(f"v_pk_add_f32 {vr(d+k,2)}, {vr(x+k,2)}, {vr(y+k,2)}")
        else:
            for k in range(4): a(f"v_add_f32 v{d+k}, v{x+k}, v{y+k}")
    def bc(s):
        return vr(s & ~1, 2), s & 1
    def mul4(d, s, x):
        if pk:
            p, o = bc(s)
            for k in (0, 2): a(f"v_pk_mul_f32 {vr(d+k,2)}, {p}, {vr(x+k,2)} op_sel:[{o},0] op_sel_hi:[{o},1]")
        else:
            for k in range(4): a(f"v_mul_f32 v{d+k}, v{s}, v{x+k}")
    def fma4(d, s, x, c):
        if pk:
            p, o = bc(s)
            for k in (0, 2): a(f"v_pk_fma_f32 {vr(d+k,2)}, {p}, {vr(x+k,2)}, {vr(c+k,2)} op_sel:[{o},0,0] op_sel_hi:[{o},1,1]")
        else:
            for k in range(4): a(f"v_fma_f32 v{d+k}, v{s}, v{x+k}, v{c+k}")
    slow = []
    njit = [0]
    def jitter():
        if not jit: return
        njit[0] += 1; k = njit[0]
        a(f"s_mul_i32 s101, s2, {4*k*jit+1}"); a(f"s_mul_i32 s100, s34, {2*k+3}"); a("s_add_u32 s101, s101, s100"); a("s_add_u32 s101, s101, s36")
        a(f"s_mul_i32 s101, s101, 0x9e3779b1"); a("s_lshr_b32 s101, s101, 29"); a("s_cmp_lg_u32 s101, 0"); a(f"s_cbranch_scc1 L_jit{k}")
        a("s_sleep 127"); a("s_sleep 127"); a(f"L_jit{k}:")
    def pub(name, text, role):
        a.vmem(text, name, role)
        a("s_bitcmp1_b32 s31, 0"); a(f"s_cbranch_scc1 L_{name}far"); a(f"L_{name}near:")
        slow.extend([f"L_{name}far:", text + " sc1", f"s_branch L_{name}near"])
    def retry(name, loads):
        slow.append(f"L_{name}retry:"); slow.extend(loads)
        slow.extend(["s_sub_u32 s77, s77, 1", "s_waitcnt vmcnt(0)", "s_cbranch_scc1 L_exit", f"s_branch L_{name}chk"])

    stream = [("K", i) for i in range(qp)] + [("q", 0)] + [("K", i) for i in range(qp, 32)] + [("V", i) for i in range(32)] + [("ml", 0)] + [("C", i) for i in range(8)]
    pos = [0]; kfree = [0]
    def vreg(i): return vr(64+4*i) if i < 16 else ar(4*(i-16))
    qloads = [f"global_load_dwordx4 {vr(16+4*e)}, v3, s[28:29] offset:{e*4096-2048} sc1" for e in range(2)]
    guloads = [f"global_load_dwordx4 {vr(48+4*gu)}, v38, s[28:29] offset:{gu*1024} sc1" for gu in range(2)]
    mlload = "global_load_dwordx4 v[28:31], v44, s[28:29] sc1"
    gload = "global_load_dwordx2 v[36:37], v38, s[28:29] sc1"
    def can_issue():
        if pos[0] >= len(stream): return False
        k, i = stream[pos[0]]
        return not (k == "V" and i >= 16 and kfree[0] <= i - 16)
    def issue(n=1):
        for _ in range(n):
            if not can_issue(): return
            k, i = stream[pos[0]]; pos[0] += 1
            if k == "K" or k == "V":
                if k == "K": a.vmem(f"buffer_load_dwordx4 {ar(4*i)}, v12, s[44:47], s3 offen {pol}", f"K{i}")
                else: a.vmem(f"buffer_load_dwordx4 {vreg(i)}, v13, s[48:51], s3 offen {pol}", f"V{i}")
                a("s_addk_i32 s3, 4096"); a("s_bitset0_b32 s3, 17")
            elif k == "q":
                a("s_cmp_eq_u32 s34, 1"); a("s_cbranch_scc0 L_noqp")
                for t in qloads: a.vmem(t, "q", "qw")
                a("L_noqp:")
                a("s_cmp_eq_u32 s64, 2"); a("s_cbranch_scc0 L_nogp")
                for t in guloads: a.vmem(t, "gup", "hc")
                a("L_nogp:")
            elif k == "ml":
                if TAT is None:
                    if YT == 1: a.vmem("buffer_load_dword v28, v39, s[20:23], 0 offen sc1", "yt")
                    if otouch: a.vmem("global_load_dword v28, v45, s[28:29] sc1", "ot")
                a.vmem(gload.replace(" sc1", ""), "gg")
                a.vmem(mlload.replace(" sc1", ""), "ml")
            elif k == "C":
                a.vmem(f"buffer_load_dwordx4 {ar(64+4*i)}, v14, s[52:55], {'s66' if i < 4 else 's67'} offen offset:{(i%4)*1280} {pol}", f"C{i}")
    def ahead(item):
        tgt = stream.index(item) + D
        while pos[0] <= tgt and can_issue(): issue()

    a(f"{KN}:")
    stamp(0)
    a("s_load_dwordx2 s[44:45], s[0:1], 8")
    a("s_cmpk_ge_u32 s2, 0x100")
    a("s_cbranch_scc1 L_exit")
    if perm == 1:
        a("s_lshr_b32 s3, s2, 3"); a("s_and_b32 s2, s2, 7"); a("s_lshl_b32 s2, s2, 5"); a("s_or_b32 s2, s2, s3")
    if perm == 2:
        a("s_cmp_ge_u32 s2, 224"); a("s_cselect_b32 s3, 1, 0"); a("s_xor_b32 s2, s2, s3")
    a("v_lshrrev_b32 v1, 6, v0")
    if pf:
        a("s_getpc_b64 s[30:31]")
        a("L_pc:")
        a("s_lshr_b32 s3, s2, 3"); a("s_lshl_b32 s3, s3, 9")
        a("v_lshl_add_u32 v3, v1, 7, s3")
        a("v_min_u32 v3, L_last-L_pc-256, v3")
        a.vmem("global_load_dword v3, v3, s[30:31] offset:256", "pf")
    a("v_and_b32 v0, 63, v0")
    a("v_readfirstlane_b32 s34, v1")
    a("s_and_b32 s32, s2, 31")
    a("s_lshr_b32 s33, s2, 5")
    a("v_lshrrev_b32 v1, 4, v0")
    a("v_and_b32 v2, 15, v0")
    a("s_brev_b32 s46, 16"); a("s_mov_b32 s47, 0x20000"); a("s_mov_b64 s[50:51], s[46:47]")
    a("s_lshr_b32 s3, s33, 2"); a("s_lshl_b32 s3, s3, 5"); a("s_add_u32 s3, s3, s32"); a("s_lshl_b32 s3, s3, 4")
    a("s_or_b32 s67, s33, 12"); a("s_or_b32 s3, s3, s67"); a("s_lshl_b32 s3, s3, 7"); a("s_add_u32 s3, s3, s34"); a("s_lshl_b32 s3, s3, 10")
    a("v_lshl_add_u32 v12, v2, 2, v1"); a("v_lshl_add_u32 v12, v12, 4, s3")
    a("v_lshl_add_u32 v13, v0, 4, s3")
    a(f"s_mul_i32 s3, s32, {rot[0]}"); a(f"s_mul_i32 s67, s33, {rot[1]}"); a("s_add_u32 s3, s3, s67")
    a("s_and_b32 s3, s3, 31"); a("s_lshl_b32 s3, s3, 12")
    a("s_mov_b32 s40, s32")
    for x, y in remap:
        a(f"s_cmp_eq_u32 s32, {x}"); a(f"s_cselect_b32 s40, {y}, s40"); a(f"s_cmp_eq_u32 s32, {y}"); a(f"s_cselect_b32 s40, {x}, s40")
    a("s_lshr_b32 s35, s33, 1"); a("s_lshl_b32 s35, s35, 2"); a("s_add_u32 s35, s35, s34"); a("s_mulk_i32 s35, 40")
    a("v_mad_u32_u24 v40, v1, 10, s35")
    a("s_and_b32 s41, s33, 1")
    a("s_lshl_b32 s78, s32, 1"); a("s_add_u32 s78, s78, s41"); a("s_lshl_b32 s78, s78, 7"); a("s_lshl_b32 s79, s40, 7")
    a("s_mov_b32 vcc_lo, 0xff00ff00"); a("s_mov_b32 vcc_hi, vcc_lo")
    a("v_mov_b32 v38, 0x2000"); a("v_mov_b32 v39, 3456"); a("v_cndmask_b32 v38, v38, v39, vcc"); a("v_mov_b32 v39, 0")
    a("v_mov_b32 v41, s78"); a("v_mov_b32 v42, s79"); a("v_cndmask_b32 v41, v41, v42, vcc")
    a("v_and_b32 v42, 7, v2"); a("v_lshl_add_u32 v41, v42, 4, v41"); a("v_mad_u32_u24 v36, v40, v38, v41"); a("v_mov_b32 v37, 0")
    a("v_lshrrev_b32 v44, 3, v2"); a("v_mul_u32_u24 v44, 1280, v44"); a("v_lshl_add_u32 v44, v40, 1, v44")
    a("s_waitcnt lgkmcnt(0)")
    stamp(1)
    a("s_load_dwordx16 s[4:19], s[0:1], 0")
    issue(KF)
    a("s_waitcnt lgkmcnt(0)")
    a("s_load_dwordx8 s[20:27], s[0:1], 64")
    a("s_load_dwordx2 s[28:29], s[0:1], 96")
    a("s_cmp_eq_u32 s41, 0"); a("s_cselect_b64 s[16:17], s[16:17], s[18:19]")
    a("v_mov_b32 v34, s10"); a("v_mov_b32 v35, s11"); a("v_mov_b32 v32, s16"); a("v_mov_b32 v33, s17")
    a("v_cndmask_b32 v34, v34, v32, vcc"); a("v_cndmask_b32 v35, v35, v33, vcc")
    a("s_not_b64 s[42:43], vcc"); a("s_cmp_ge_u32 s40, 27"); a("s_cselect_b64 s[42:43], s[42:43], -1")
    a("v_lshl_add_u64 v[36:37], v[36:37], 0, v[34:35]")
    a("s_mov_b64 exec, s[42:43]")
    for t in range(10):
        a.vmem(f"global_load_dwordx4 {vr(64+4*t)}, v[36:37], off {pol}", f"A{t}")
        if t < 9: a("v_lshl_add_u64 v[36:37], v[36:37], 0, v[38:39]")
    a("s_mov_b64 exec, -1")
    a.vmem("global_load_dwordx4 v[16:19], v44, s[4:5]", "x0")
    a.vmem("global_load_dword v20, v44, s[4:5] offset:16", "x1")
    a("s_mov_b64 s[48:49], s[8:9]")
    a("s_waitcnt lgkmcnt(0)")
    a("s_load_dwordx4 s[36:39], s[28:29], 0")
    a("s_lshl_b32 s14, s2, 2"); a("s_add_u32 s14, s14, s34"); a(f"s_sub_u32 s14, s14, {((224+HG) << 2) + 2}")
    if RACE:
        a(f"s_cmp_eq_u32 s14, {(HP2-HG)*4}"); a("s_cbranch_scc0 L_nopl")
        if PREP == 'st4':
            a("v_and_b32 v55, 7, v0"); a("v_lshlrev_b32 v55, 4, v55"); a("v_lshrrev_b32 v54, 3, v0"); a("v_lshl_add_u32 v55, v54, 8, v55"); a(f"v_add_u32 v55, {PL}, v55")
            for k in range(4): a(f"v_mov_b32 v{56+k}, 0")
            a.vmem("global_store_dwordx4 v55, v[56:59], s[28:29] sc1", "pl", "pl")
            a("v_add_u32 v55, 0x2000, v55")
            a.vmem("global_store_dwordx4 v55, v[56:59], s[28:29] sc1", "pl", "pl")
        else:
            a("v_and_b32 v55, 7, v0"); a("v_lshlrev_b32 v55, 8, v55"); a("v_lshrrev_b32 v54, 3, v0"); a("v_lshl_add_u32 v55, v54, 13, v55"); a(f"v_add_u32 v55, {PL}, v55")
            a("v_mov_b32 v54, 0"); a("s_mov_b64 exec, 0xffff")
            a.vmem("global_store_dword v55, v54, s[28:29] sc1" if PREP == 'st' else "global_load_dword v55, v55, s[28:29]", "pl", "pl")
            a("s_mov_b64 exec, -1")
        a("L_nopl:")
    issue(3)
    a("v_mul_u32_u24 v14, 10240, v1"); a("v_lshl_add_u32 v14, v2, 4, v14")
    a("s_mov_b32 s55, 0x20000"); a("s_mov_b32 s77, %d" % SPIN); a("s_movk_i32 s76, 0x%x" % (0xffff ^ TAGM))
    a("s_cmp_ge_u32 s33, 5"); a("s_cbranch_scc1 L_role1")
    a("s_mov_b32 s64, 0")
    a("s_mov_b64 s[52:53], s[12:13]"); a("s_mov_b32 s54, %d" % (4096*1280))
    a("s_lshl_b32 s66, s32, 2"); a("s_add_u32 s66, s66, s34"); a("s_mul_i32 s66, s66, %d" % (32*1280))
    a("s_mov_b32 s65, s33")
    a("s_branch L_role2")
    a("L_role1:")
    a("s_mov_b64 s[52:53], s[20:21]"); a("s_mov_b32 s54, 0"); a("s_mov_b32 s64, 3")
    a("s_mov_b32 s65, 0"); a("s_mov_b32 s66, 0")
    a("s_cmp_ge_u32 s40, 27"); a("s_cbranch_scc1 L_role2")
    a("s_mov_b32 s64, 2")
    a("s_sub_u32 s78, s33, 5"); a("s_lshl_b32 s78, s78, 2"); a("s_add_u32 s78, s78, s34")
    a("s_cmp_ge_u32 s78, 10"); a("s_cbranch_scc1 L_role2")
    a("s_lshr_b32 s65, s78, 1")
    a("s_lshl_b32 s66, s40, 1"); a("s_and_b32 s79, s78, 1"); a("s_add_u32 s66, s66, s79"); a("s_mul_i32 s66, s66, %d" % (32*1280))
    a("s_mov_b32 s64, 1"); a("s_mov_b32 s54, %d" % (1728*1280))
    a("L_role2:")
    a("s_lshl_b32 s78, s65, 8"); a("s_add_u32 s66, s66, s78"); a("s_add_u32 s67, s66, 5120")
    a("s_mov_b64 s[56:57], s[24:25]"); a("s_movk_i32 s58, 2560"); a("s_mov_b32 s59, 0x20000")
    a("s_sub_u32 s15, 7, s33"); a("s_mul_i32 s15, s15, 3"); a("s_add_u32 s15, s15, s34"); a("s_sub_u32 s15, s15, 1")
    a("s_cmp_eq_u32 s34, 0"); a("s_cselect_b32 s15, 63, s15")
    a("s_cmp_ge_u32 s40, 27"); a("s_cselect_b32 s15, s15, 63")
    issue(3)
    a("s_mov_b32 s31, 0")
    a("v_and_b32 v8, 3, v2"); a("v_lshlrev_b32 v8, 4, v8")
    a("v_mov_b32 v10, 0xffff"); a("v_mov_b32 v11, 0")
    a("v_lshlrev_b64 v[10:11], v8, v[10:11]")
    a("s_mov_b32 vcc_lo, 0x0f0f0f0f"); a("s_mov_b32 vcc_hi, vcc_lo")
    a("v_cndmask_b32 v4, 0, v10, vcc"); a("v_cndmask_b32 v5, 0, v11, vcc")
    a("v_xor_b32 v6, v4, v10"); a("v_xor_b32 v7, v5, v11")
    a("v_lshrrev_b32 v15, 1, v1"); a("v_lshlrev_b32 v15, 9, v15"); a("v_lshl_add_u32 v15, v2, 5, v15")
    a("v_and_b32 v8, 1, v1"); a("v_lshl_add_u32 v15, v8, 4, v15")
    a("s_mov_b32 s68, 0x000f000f"); a("s_mov_b32 s69, s68")
    for t in range(1, 4): a(f"s_lshl_b64 s[{68+2*t}:{69+2*t}], s[68:69], {4*t}")
    a("s_mov_b32 s78, 0x01000100"); a("s_mov_b32 s79, 0x03020302")
    a("s_lshl_b32 s35, s34, 10"); a("v_lshl_add_u32 v47, v0, 4, s35")
    a("v_mov_b32 v52, 0"); a("v_mov_b32 v53, 0"); a("s_lshl_b32 s35, s34, 3"); a("v_mov_b32 v54, s35")
    a(f"ds_write_b64 v54, v[52:53] offset:{LML}")
    while pos[0] < PRE + KF: issue()
    a.wait("x1")
    stamp(2)
    for t in range(11):
        if t < 10:
            A = 56 + 4*(t % 2)
            a(f"v_perm_b32 v21, v{16+t//2}, v{16+t//2}, {'s79' if t % 2 else 's78'}")
            for q in range(4): a(f"v_and_b32 v{A+q}, v21, v{4+q}")
        if t > 0: a(f"v_mfma_f32_16x16x32_bf16 {vr(32)}, {vr(56+4*((t-1)%2))}, {vr(64+4*(t-1))}, {'0' if t == 1 else vr(32)}")
    issue()
    a(f"ds_write_b128 v47, {vr(32)}")
    a("s_waitcnt lgkmcnt(0)"); a("s_barrier")
    for i in range(4): a(f"s_add_u32 s{36+i}, s{36+i}, 1")
    a("s_lshr_b32 s61, s36, 10"); a("s_add_u32 s61, s61, s36"); a("s_lshr_b32 s62, s36, 20"); a("s_add_u32 s62, s62, s36")
    for i, src in enumerate(("s36", "s61", "s62", "s39")):
        a(f"s_andn2_b32 s{60+i}, {src}, s76"); a(f"v_mov_b32 v{8+i}, s{60+i}")
    a("s_getreg_b32 s30, hwreg(HW_REG_XCC_ID, 0, 4)")
    a("s_lshl_b32 s35, s39, 4"); a("s_or_b32 s30, s30, s35"); a("s_andn2_b32 s30, s30, s76")
    a("s_lshl_b32 s35, s32, 3"); a("s_add_u32 s35, s35, s33"); a("s_lshl_b32 s35, s35, 10"); a(f"s_add_u32 s35, s35, {AP}")
    a("v_add_u32 v36, s35, v15")
    jitter()
    a("s_cmp_eq_u32 s34, 1"); a("s_cbranch_scc0 L_noApub")
    a("v_lshlrev_b32 v3, 4, v0")
    for p, o in enumerate((0, 2048, 3072)): a(f"ds_read_b128 {vr(16+4*p)}, v3 offset:{o}")
    a("s_mov_b32 vcc_lo, 0xff00ff00"); a("s_mov_b32 vcc_hi, vcc_lo"); a("v_mov_b32 v3, s30"); a("v_cndmask_b32 v3, v3, v11, vcc")
    a("s_waitcnt lgkmcnt(0)")
    add4(32, 16, 32); add4(20, 20, 24); add4(32, 32, 20)
    settag(32, 3)
    a("s_mov_b64 exec, s[42:43]")
    a.vmem(f"global_store_dwordx4 v36, {vr(32)}, s[28:29]", "Apub", "qw")
    a("s_mov_b64 exec, -1")
    a("L_noApub:")
    stamp(3)
    issue(2)
    a("s_lshl_b32 s35, s32, 13"); a(f"s_add_u32 s35, s35, {AP+256}")
    a("s_and_b32 s78, s34, 1"); a("s_lshl_b32 s78, s78, 7"); a("s_add_u32 s78, s78, s35")
    a("v_and_b32 v40, 3, v2"); a("v_lshlrev_b32 v38, 11, v40"); a("v_lshrrev_b32 v16, 3, v2"); a("v_lshl_add_u32 v38, v16, 9, v38"); a("v_lshl_add_u32 v38, v1, 5, v38")
    a("v_and_b32 v16, 4, v2"); a("v_lshl_add_u32 v38, v16, 2, v38"); a("v_add_u32 v38, s78, v38")
    a("s_lshr_b32 s78, s33, 2"); a("s_lshl_b32 s78, s78, 9"); a("s_add_u32 s35, s35, s78"); a(f"s_addk_i32 s35, {2048-256}")
    a("v_lshl_add_u32 v3, v1, 6, v2"); a("v_lshl_add_u32 v3, v3, 4, s35")
    a("v_lshrrev_b32 v16, 5, v0"); a("v_and_b32 v17, 31, v0"); a("v_lshlrev_b32 v39, 2, v16"); a("v_lshl_add_u32 v39, v17, 3, v39")
    a("v_lshlrev_b32 v40, 6, v40"); a("v_lshl_add_u32 v40, v1, 4, v40")
    assert pos[0] <= stream.index(("q", 0))
    tgt = stream.index(("q", 0)) + DQ
    XR, WR = (48, 52, 16), (56, 60, 20)
    a("s_cmp_eq_u32 s14, 0"); a("s_cbranch_scc0 L_ng1")
    a("v_and_b32 v41, 31, v0"); a("v_lshlrev_b32 v41, 4, v41"); a("v_lshrrev_b32 v42, 5, v0"); a("v_mul_u32_u24 v42, 1280, v42"); a("v_add_u32 v42, v42, v41")
    for k in range(8): a(f"v_mov_b32 v{16+k}, 0")
    for k in range(3):
        if k == 2: a("s_mov_b32 exec_lo, 0xffff"); a("s_mov_b32 exec_hi, exec_lo")
        a.vmem(f"global_load_dwordx4 {vr(XR[k])}, v42, s[4:5] offset:{512*k}", "fx", "gc")
        a.vmem(f"global_load_dwordx4 {vr(WR[k])}, v41, s[22:23] offset:{512*k}", "fx", "gc")
    a("s_mov_b64 exec, -1")
    a("L_ng1:")
    while pos[0] < GPOS + 8 and pos[0] <= tgt and can_issue(): issue()
    a("s_cmp_eq_u32 s14, 0"); a("s_cbranch_scc0 L_ng2")
    a("s_mov_b32 s41, 0")
    if RACE:
        RN, SH = RACE
        a(f"s_mov_b32 s78, {PL}"); a(f"s_mov_b32 s79, {PL+0x2000}")
        for sh in range(SH):
            A = [16+k for k in range(RN)]; B = [6+k for k in range(RN)]
            for r in A + B: a(f"s_mov_b32 s{r}, -1")
            a("s_mov_b32 s35, 48")
            for k in range(RN):
                pair = [(A[k], "s78"), (B[k], "s79")]
                if (k + sh) % 2: pair.reverse()
                for r, o in pair: a(f"s_load_dword s{r}, s[28:29], {o}")
                a("s_addk_i32 s78, 256"); a("s_addk_i32 s79, 256")
            a(f"L_rc{sh}:")
            a("s_mov_b64 s[10:11], 0")
            for k in range(RN):
                chk = [(A[k], "s10"), (B[k], "s11")]
                if k % 2: chk.reverse()
                for r, c in chk: a(f"s_cmp_eq_u32 s{r}, -1"); a(f"s_addc_u32 {c}, {c}, 0")
            a("s_add_u32 s41, s41, s10"); a("s_sub_u32 s41, s41, s11")
            a("s_sub_u32 s35, s35, 1"); a(f"s_cbranch_scc1 L_rd{sh}")
            a("s_or_b32 s10, s10, s11"); a(f"s_cbranch_scc1 L_rc{sh}")
            a(f"L_rd{sh}:"); a("s_waitcnt lgkmcnt(0)")
        if stamps: a("s_add_u32 s100, s41, 0x14000")
        a("s_cmp_gt_i32 s41, 0"); a("s_cselect_b32 s41, 1, 0")
    a.wait("fx", "gc")
    first = True
    for xb, wb in zip(XR, WR):
        for k in range(4):
            x, w = xb+k, wb+k
            a(f"v_lshlrev_b32 v43, 16, v{x}"); a(f"v_lshlrev_b32 v41, 16, v{w}"); a("v_mul_f32 v43, v43, v41")
            a(f"v_and_b32 v{x}, 0xffff0000, v{x}"); a(f"v_and_b32 v{w}, 0xffff0000, v{w}"); a(f"v_mul_f32 v41, v{x}, v{w}")
            rnd2(43, 41, x)
            if first: a("v_add_f32 v42, v43, v41")
            else: a("v_add_f32 v42, v42, v43"); a("v_add_f32 v42, v42, v41")
            first = False
    for m in ("quad_perm:[1,0,3,2]", "quad_perm:[2,3,0,1]", "row_half_mirror", "row_mirror"):
        a(f"v_add_f32_dpp v42, v42, v42 {m} {DPPF}")
    a("v_add_f32_dpp v42, v42, v42 row_bcast:15 row_mask:0xa bank_mask:0xf")
    a("v_cvt_pk_bf16_f32 v42, v42, v42"); a("v_lshlrev_b32 v42, 16, v42")
    a(f"v_mul_f32 v42, 0x{f2u(-LOG2E):x}, v42"); a("v_exp_f32 v42, v42"); a("v_add_f32 v42, 1.0, v42"); a("v_rcp_f32 v42, v42")
    a("v_cvt_pk_bf16_f32 v42, v42, v42"); a("v_lshlrev_b32 v42, 16, v42")
    a("v_sub_f32 v43, 1.0, v42"); a("v_cvt_pk_bf16_f32 v48, v42, v43")
    a("s_lshl_b32 s35, s38, 1"); a("s_or_b32 s35, s35, s41"); a("v_mov_b32 v49, s35")
    a("v_lshrrev_b32 v52, 5, v0"); a("v_lshlrev_b32 v52, 3, v52"); a(f"v_add_u32 v52, {GG}, v52")
    if jit:
        for _ in range(6): a("s_sleep 127")
    a("s_brev_b32 exec_lo, 1"); a("s_mov_b32 exec_hi, exec_lo")
    a.vmem("global_store_dwordx2 v52, v[48:49], s[28:29] sc1", "gpub", "gc")
    a("s_mov_b64 exec, -1")
    a("L_ng2:")
    while pos[0] <= tgt and can_issue(): issue()
    a("s_cmp_eq_u32 s34, 1"); a("s_cbranch_scc0 L_noq")
    a.wait("q", "qw")
    a("L_qchk:")
    untag(16, 16, 8, 37, t3="s30")
    a("s_cbranch_vccnz L_qslow")
    a("L_qok:")
    slow.extend(["L_qslow:", "s_bitcmp1_b32 s31, 1", "s_cbranch_scc1 L_qs1", "s_bitset1_b32 s31, 1", "s_mov_b64 exec, s[42:43]",
                 f"global_store_dwordx4 v36, {vr(32)}, s[28:29] sc1", "s_mov_b64 exec, -1", "L_qs1:"])
    slow.extend([f"v_and_b32 v{19+4*i}, -16, v{19+4*i}" for i in range(2)])
    slow.extend(["v_or_b32 v37, v16, v17"] + [f"v_or3_b32 v37, v37, v{16+i}, v{17+i}" for i in range(2, 8, 2)])
    slow.extend([f"v_and_b32 v37, {TAGM}, v37", "v_cmp_ne_u32 vcc, 0, v37", "s_cbranch_vccnz L_qretry", "s_bitset1_b32 s31, 0", "s_branch L_qok"])
    retry("q", qloads)
    add4(16, 16, 20)
    a("v_mov_b32 v20, s31"); a("v_mov_b32 v21, 0")
    a("v_permlane32_swap_b32 v16, v18"); a("v_permlane32_swap_b32 v17, v19")
    a("v_add_f32 v16, v16, v18"); a("v_add_f32 v17, v17, v19")
    a("v_cvt_pk_bf16_f32 v16, v16, v17")
    a(f"ds_write_b32 v21, v20 offset:{LQ+256}")
    a(f"ds_write_b32 v39, v16 offset:{LQ}")
    a("s_waitcnt lgkmcnt(0)")
    a("L_noq:")
    a("s_barrier")
    stamp(4)
    a("v_mov_b32 v21, 0")
    a(f"ds_read_b128 v[24:27], v40 offset:{LQ}")
    a(f"ds_read_b32 v20, v21 offset:{LQ+256}")
    issue()
    a("s_waitcnt lgkmcnt(0)")
    a("v_readfirstlane_b32 s31, v20")
    jitter()
    a("s_cmp_eq_u32 s64, 2"); a("s_cbranch_scc0 L_noh")
    a.wait("gup", "hc")
    a("L_gchk:")
    untag(48, 48, 8, 37)
    a("s_cbranch_vccnz L_gretry")
    retry("g", guloads)
    for qpm in ("[1,0,3,2]", "[2,3,0,1]"):
        for k in range(8): a(f"v_add_f32_dpp v{48+k}, v{48+k}, v{48+k} quad_perm:{qpm} {DPPF}")
    rnd2(48, 49, 56); rnd2(50, 51, 57); rnd2(52, 53, 58); rnd2(54, 55, 59)
    c1 = -2*math.sqrt(2/math.pi)*LOG2E; c2 = c1*0.044715
    a(f"v_mov_b32 v60, 0x{f2u(c1):x}"); a(f"s_mov_b32 s35, 0x{f2u(c2):x}")
    for k in range(4): a(f"v_mul_f32 v{56+k}, v{48+k}, v{48+k}")
    for k in range(4): a(f"v_fma_f32 v{56+k}, v{56+k}, s35, v60")
    for k in range(4): a(f"v_mul_f32 v{56+k}, v{56+k}, v{48+k}")
    for k in range(4): a(f"v_exp_f32 v{56+k}, v{56+k}")
    for k in range(4): a(f"v_add_f32 v{56+k}, 1.0, v{56+k}")
    for k in range(4): a(f"v_rcp_f32 v{56+k}, v{56+k}")
    for k in range(4): a(f"v_mul_f32 v{48+k}, v{48+k}, v{56+k}")
    rnd2(48, 49, 56); rnd2(50, 51, 57)
    for k in range(4): a(f"v_mul_f32 v{48+k}, v{48+k}, v{52+k}")
    rnd2(48, 49, 56); rnd2(50, 51, 57)
    for k in range(4): a(f"v_or_b32 v{48+k}, v{48+k}, v{8+k}")
    a("s_lshl_b32 s35, s32, 1"); a("s_and_b32 s78, s34, 1"); a("s_add_u32 s35, s35, s78"); a("s_lshl_b32 s35, s35, 8"); a(f"s_add_u32 s35, s35, {HP}")
    a("v_and_b32 v52, 8, v2"); a("v_lshlrev_b32 v52, 4, v52"); a("v_and_b32 v53, 4, v2"); a("v_lshl_add_u32 v52, v53, 2, v52"); a("v_lshl_add_u32 v52, v1, 5, v52")
    a("v_add_u32 v52, s35, v52")
    a("s_mov_b32 exec_lo, 0x11111111"); a("s_mov_b32 exec_hi, exec_lo")
    pub("hpub", "global_store_dwordx4 v52, v[48:51], s[28:29]", "hc")
    a("s_mov_b64 exec, -1")
    a("L_noh:")
    QB = (32, 36, 40, 60)
    for t in range(4):
        for i in range(4): a(f"v_cndmask_b32_e64 v{QB[t]+i}, 0, v{24+i}, s[{68+2*t}:{69+2*t}]")
    issue()
    def qk_mfma(p):
        L = []
        for t in range(4):
            for uu in range(2):
                u = 2*p + uu; d = 16 + 8*(p % 2) + 4*uu
                L.append(f"v_mfma_f32_16x16x32_bf16 {vr(d)}, {ar(16*u+4*t)}, {vr(QB[t])}, {'0' if t == 0 else vr(d)}")
        return L
    def qk_red(p):
        L = []
        for jj in range(4):
            for uu in range(2):
                u = 2*p + uu; d = 16 + 8*(p % 2) + 4*uu
                if jj == 0: L.append(f"v_mov_b32_dpp v{48+u}, v{d} quad_perm:[0,0,0,0] {DPPF}")
                else: L.append(f"v_add_f32_dpp v{48+u}, v{d+jj}, v{48+u} quad_perm:[{jj},{jj},{jj},{jj}] {DPPF}")
        u = 48 + 2*p
        L += [f"v_cvt_pk_bf16_f32 v56, v{u}, v{u+1}", f"v_lshlrev_b32 v{u}, 16, v56", f"v_and_b32 v{u+1}, 0xffff0000, v56",
              f"v_mul_f32 v{u}, 0x{f2u(128**-0.5):x}, v{u}", f"v_mul_f32 v{u+1}, 0x{f2u(128**-0.5):x}, v{u+1}",
              f"v_cvt_pk_bf16_f32 v56, v{u}, v{u+1}", f"v_lshlrev_b32 v{u}, 16, v56", f"v_and_b32 v{u+1}, 0xffff0000, v56"]
        return L
    for p in range(5):
        M = qk_mfma(p) if p < 4 else []
        R = qk_red(p-1) if p > 0 else []
        if p < 4:
            ahead(("K", 8*p+7)); a.wait(f"K{8*p+7}")
        for m in M[:4]: a(m)
        M = M[4:]
        while M or R:
            for _ in range(4):
                if R: a(R.pop(0))
            if M: a(M.pop(0))
        kfree[0] = min(32, 8*(p+1))
        issue()
    a("v_max3_f32 v16, v48, v49, v50"); a("v_max3_f32 v17, v51, v52, v53"); a("v_max3_f32 v16, v16, v54, v55"); a("v_max_f32 v16, v16, v17")
    a(f"v_max_f32_dpp v16, v16, v16 row_ror:8 {DPPF}"); a(f"v_max_f32_dpp v16, v16, v16 row_ror:4 {DPPF}")
    a("v_max_f32_dpp v16, v16, v16 row_bcast:15 row_mask:0xa bank_mask:0xf")
    a("v_max_f32_dpp v16, v16, v16 row_bcast:31 row_mask:0xc bank_mask:0xf")
    a(f"v_mov_b32 v17, 0x{f2u(LOG2E):x}")
    a("v_mul_f32 v16, v17, v16")
    a("v_readlane_b32 s35, v16, 63")
    for u in range(8): a(f"v_fma_f32 v{48+u}, v{48+u}, v17, -s35")
    for u in range(8): a(f"v_exp_f32 v{48+u}, v{48+u}")
    a("v_add_f32 v18, v48, v49"); a("v_add_f32 v19, v50, v51"); a("v_add_f32 v20, v52, v53"); a("v_add_f32 v21, v54, v55")
    a("v_add_f32 v18, v18, v19"); a("v_add_f32 v20, v20, v21"); a("v_add_f32 v17, v18, v20")
    issue()
    for u in range(8): a(f"v_cvt_pk_bf16_f32 v{48+u}, v{48+u}, v{48+u}")
    a(f"v_add_f32_dpp v17, v17, v17 row_ror:8 {DPPF}"); a(f"v_add_f32_dpp v17, v17, v17 row_ror:4 {DPPF}")
    a("v_add_f32_dpp v17, v17, v17 row_bcast:15 row_mask:0xa bank_mask:0xf")
    a("v_add_f32_dpp v17, v17, v17 row_bcast:31 row_mask:0xc bank_mask:0xf")
    a("s_lshl_b32 s35, s34, 3"); a("v_mov_b32 v18, s35")
    a("s_mov_b32 exec_lo, 0"); a("s_brev_b32 exec_hi, 1")
    a(f"ds_write_b64 v18, v[16:17] offset:{LML}")
    a("s_mov_b64 exec, -1")
    stamp(5)
    a("v_lshrrev_b32 v44, 3, v2"); a("v_and_b32 v45, 3, v2"); a("v_lshl_add_u32 v44, v44, 2, v45")
    a("s_lshl_b32 s35, s32, 13"); a(f"s_add_u32 s35, s35, {OP}"); a("v_lshl_add_u32 v44, v44, 10, s35")
    a("v_and_b32 v46, 4, v2"); a("v_lshlrev_b32 v46, 2, v46"); a("v_lshl_add_u32 v46, v1, 5, v46"); a("s_lshl_b32 s78, s34, 7"); a("v_add3_u32 v45, v46, s78, v44")
    a("v_add_u32 v44, 512, v44")
    a("s_cmp_eq_u32 s64, 1"); a("s_cbranch_scc0 L_noha")
    a("s_lshl_b32 s78, s32, 1"); a("s_and_b32 s79, s34, 1"); a("s_add_u32 s78, s78, s79"); a("s_lshl_b32 s78, s78, 8"); a(f"s_add_u32 s78, s78, {HP}")
    a("v_and_b32 v44, 8, v2"); a("v_lshlrev_b32 v44, 4, v44"); a("v_add3_u32 v44, v44, s78, v46")
    a("L_noha:")
    a("s_lshl_b32 s78, s33, 10"); a("s_add_u32 s35, s35, s78"); a("v_add_u32 v46, s35, v15")
    a("s_lshl_b32 s35, s65, 16"); a(f"s_add_u32 s35, s35, {YY + YP}")
    a("s_lshr_b32 s79, s32, 3"); a("s_lshl_b32 s79, s79, 14"); a("s_add_u32 s35, s35, s79")
    a("s_and_b32 s79, s32, 7"); a("s_lshl_b32 s79, s79, 10"); a("s_add_u32 s35, s35, s79")
    a("s_and_b32 s79, s32, 14"); a("s_lshl_b32 s79, s79, 6"); a("s_add_u32 s35, s35, s79")
    a("v_xor_b32 v3, s35, v15")
    a("s_lshl_b32 s35, s32, 3"); a("s_add_u32 s35, s35, s65"); a("s_lshl_b32 s35, s35, 10"); a(f"s_add_u32 s35, s35, {YF}")
    a("v_add_u32 v39, s35, v15")
    a("s_mov_b64 s[20:21], s[28:29]"); a("s_mov_b32 s23, 0x20000")
    a("s_cmp_lt_u32 s40, 27"); a("s_cselect_b32 s22, 0x200000, 0"); a("s_cselect_b64 s[24:25], s[60:61], 0"); a("s_cselect_b64 s[26:27], s[62:63], 0")
    a("s_cmp_eq_u32 s34, 0"); a("s_cselect_b32 s22, s22, 0")
    a("v_lshrrev_b32 v38, 5, v0"); a("v_lshlrev_b32 v38, 3, v38"); a(f"v_add_u32 v38, {GG}, v38"); a("s_lshl_b32 s41, s38, 1")
    for i in range(32):
        u, t = i >> 2, i & 3
        A = 56 + 4*(i % 2)
        for q in range(4): a(f"v_and_b32_dpp v{A+q}, v{48+u}, v{4+q} row_newbcast:{4*t} {DPPF}")
        if i in sync: a("s_barrier")
        ahead(("V", i))
        if i == 31:
            while can_issue(): issue()
        if i == TAT:
            a("v_sub_u32 v29, v39, v15"); a("v_and_b32 v28, 7, v0"); a("v_lshl_add_u32 v29, v28, 7, v29")
            a("s_mov_b32 exec_hi, 0"); a("v_mov_b32 v29, v46"); a("s_mov_b32 exec_hi, -1")
            a.vmem("global_load_dword v28, v29, s[28:29]", "tt")
        if i in (2, 20, 31): jitter()
        if i == ML_AT:
            a("s_cmp_lg_u32 s34, 0"); a("s_cbranch_scc1 L_noml")
            a("v_mov_b32 v16, 0")
            a("L_mlw:")
            a(f"ds_read_b128 v[20:23], v16 offset:{LML}"); a(f"ds_read_b128 v[24:27], v16 offset:{LML+16}")
            a("s_sub_u32 s77, s77, 1"); a("s_cbranch_scc1 L_exit")
            a("s_waitcnt lgkmcnt(0)")
            a("v_min3_u32 v17, v23, v25, v27"); a("v_cmp_eq_u32 vcc, 0, v17"); a("s_cbranch_vccnz L_mlw")
            a("v_max3_f32 v16, v20, v22, v24"); a("v_max_f32 v16, v16, v26")
            for w in range(4): a(f"v_sub_f32 v{40+w}, v{20+2*w}, v16")
            for w in range(4): a(f"v_exp_f32 v{40+w}, v{40+w}")
            a("v_mul_f32 v18, v40, v21"); a("v_fmac_f32 v18, v41, v23"); a("v_fmac_f32 v18, v42, v25"); a("v_fmac_f32 v18, v43, v27")
            a("v_mov_b32 v17, s36"); a("v_mov_b32 v19, s37")
            a("s_mov_b64 exec, 1")
            pub("mlpub", "global_store_dwordx4 v46, v[16:19], s[28:29] offset:512", "lead")
            a("s_mov_b64 exec, -1")
            a("L_noml:")
        a.wait(f"V{i}")
        if i == 31: stamp(6)
        a(f"v_mfma_f32_16x16x32_bf16 {vr(32)}, {vr(A)}, {vreg(i)}, {'0' if i == 0 else vr(32)}")
    a("s_cmp_lg_u32 s34, 0")
    a(f"ds_write_b128 v47, {vr(32)}")
    a("s_waitcnt lgkmcnt(0)"); a("s_barrier")
    a("s_cbranch_scc1 L_noopub")
    for p in range(1, 4): a(f"ds_read_b128 {vr(12+4*p)}, v47 offset:{p*1024}")
    mul4(32, 40, 32)
    a("s_mov_b32 exec_hi, 0")
    a("s_waitcnt lgkmcnt(0)")
    for p in range(1, 4): fma4(32, 40+p, 12+4*p, 32)
    settag(32)
    pub("opub", f"global_store_dwordx4 v46, {vr(32)}, s[28:29]", "lead")
    a("s_mov_b32 exec_hi, -1")
    a("L_noopub:")
    jitter()
    stamp(7)
    a("s_cmp_eq_u32 s64, 0"); a("s_cbranch_scc0 L_notwo")
    oload = "global_load_dwordx4 v[16:19], v45, s[28:29] sc1"
    a("s_barrier")
    if YT == 2: a.vmem("buffer_load_dword v52, v39, s[20:23], 0 offen sc1", "yt", "wo")
    a.vmem(oload, "op", "wo")
    a.wait("ml", "wo")
    a("L_mchk:")
    a("v_xor_b32 v29, s36, v29"); a("v_xor_b32 v31, s37, v31"); a("v_or_b32 v29, v29, v31"); a("v_cmp_ne_u32 vcc, 0, v29")
    a("s_cbranch_vccnz L_mretry")
    retry("m", [mlload])
    a(f"v_max_f32_dpp v29, v28, v28 quad_perm:[1,0,3,2] {DPPF}"); a(f"v_max_f32_dpp v29, v29, v29 quad_perm:[2,3,0,1] {DPPF}")
    a("v_sub_f32 v28, v28, v29"); a("v_exp_f32 v28, v28"); a("v_mul_f32 v30, v30, v28")
    a(f"v_add_f32_dpp v30, v30, v30 quad_perm:[1,0,3,2] {DPPF}"); a(f"v_add_f32_dpp v30, v30, v30 quad_perm:[2,3,0,1] {DPPF}")
    a("v_rcp_f32 v30, v30"); a("v_mul_f32 v28, v28, v30")
    def gcheck(name):
        a(f"L_{name}chk:")
        a("v_xor_b32 v37, s41, v37"); a("v_cmp_lt_u32 vcc, 1, v37"); a(f"s_cbranch_vccnz L_{name}retry")
        retry(name, [gload])
    gcheck("ga")
    a("v_lshlrev_b32 v36, 16, v36"); a("v_lshlrev_b32 v37, 13, v37"); a("v_xor_b32 v3, v3, v37")
    a("s_branch L_ochk")
    a("L_oloop:")
    a(oload)
    a("s_sub_u32 s77, s77, 1"); a("s_cbranch_scc1 L_exit")
    a("L_ochk:")
    a("s_waitcnt vmcnt(0)")
    if tailst: stamp(1)
    untag(16, 16, 4, 20)
    a("s_cbranch_vccnz L_oloop")
    stamp(8)
    yfload = "buffer_load_dwordx4 v[52:55], v39, s[20:23], 0 offen sc1"
    a(yfload)
    mul4(16, 28, 16)
    for qpm in ("[1,0,3,2]", "[2,3,0,1]"):
        for k in range(4): a(f"v_add_f32_dpp v{16+k}, v{16+k}, v{16+k} quad_perm:{qpm} {DPPF}")
    def cstage(src, waits):
        for k in range(4): a(f"v_cvt_pk_bf16_f32 v{48+k}, v{src+k}, v{src+k}")
        def cm(t):
            if waits: a(f"s_waitcnt vmcnt({7-t})")
            a(f"v_mfma_f32_16x16x32_bf16 {vr(32)}, {vr(64+4*t)}, {ar(64+4*t)}, {'0' if t == 0 else vr(32)}")
        for t in range(8):
            A = 64 + 4*t; hp = t >> 2; jj = t & 3
            for q in range(4):
                if (q >> 1) == hp: a(f"v_and_b32 v{A+q}, v{48+jj}, v{4+q}")
                else: a(f"v_and_b32_dpp v{A+q}, v{48+jj}, v{4+q} row_half_mirror {DPPF}")
            if t > 0 and not waits: cm(t-1)
        for t in (range(8) if waits else (7,)): cm(t)
    cstage(16, False)
    jitter()
    def yfcheck(A):
        for i in range(4): A(f"v_xor_b32 v{52+i}, s{24+i}, v{52+i}")
        A("v_or_b32 v56, v52, v53"); A("v_or3_b32 v56, v56, v54, v55"); A(f"v_and_b32 v56, {TAGM}, v56"); A("v_cmp_ne_u32 vcc, 0, v56")
    a("s_cmp_lg_u32 s34, 0")
    a(f"ds_write_b128 v47, {vr(32)} offset:4096")
    a("s_waitcnt lgkmcnt(0)"); a("s_barrier")
    a("s_cbranch_scc1 L_final")
    for p in range(1, 4): a(f"ds_read_b128 {vr(12+4*p)}, v47 offset:{4096+p*1024}")
    a("s_waitcnt vmcnt(0)")
    a("L_yfchk:")
    yfcheck(a)
    a("s_cbranch_vccnz L_yfretry")
    retry("yf", [yfload])
    a("s_waitcnt lgkmcnt(0)")
    add4(32, 32, 16); add4(20, 20, 24); add4(32, 32, 20); fma4(32, 36, 32, 52)
    settag(32)
    a(f"global_store_dwordx4 v3, {vr(32)}, s[28:29] sc1")
    a(END)
    a("L_notwo:")
    a("s_cmp_eq_u32 s64, 1"); a("s_cbranch_scc1 L_ffn")
    a("s_cmp_lt_u32 s15, 16"); a("s_cbranch_scc0 L_end")
    a("s_waitcnt vmcnt(0)")
    gcheck("gc")
    a("v_lshlrev_b32 v37, 13, v37")
    a("L_final:")
    a("s_cmp_lt_u32 s15, 16"); a("s_cbranch_scc0 L_end")
    if tailst: stamp(5)
    a("s_sub_u32 s78, s40, 27")
    a("s_lshl_b32 s35, s15, 1"); a("s_cmp_ge_u32 s15, 8"); a("s_cselect_b32 s79, 15, 0"); a("s_sub_u32 s35, s35, s79")
    a("s_lshl_b32 s67, s78, 16"); a(f"s_add_u32 s67, s67, {YY + YP}"); a("s_lshl_b32 s79, s35, 6"); a("s_or_b32 s67, s67, s79")
    a("s_lshr_b32 s79, s35, 3"); a("s_mul_i32 s65, s79, 32"); a("s_add_u32 s65, s65, s35"); a("s_lshl_b32 s78, s78, 3"); a("s_add_u32 s65, s65, s78")
    a("v_and_b32 v44, 3, v0"); a("v_lshrrev_b32 v45, 2, v0")
    a("v_and_b32 v48, 7, v45"); a("v_lshlrev_b32 v48, 10, v48"); a("v_lshl_add_u32 v48, v44, 4, v48")
    a("v_lshrrev_b32 v49, 3, v45"); a("v_lshl_add_u32 v48, v49, 14, v48")
    a("v_and_b32 v49, 14, v45"); a("v_lshl_add_u32 v48, v49, 6, v48")
    a("v_xor_b32 v48, s67, v48"); a("v_xor_b32 v48, v37, v48"); a("v_add_u32 v49, 0x8000, v48")
    a("v_lshl_add_u32 v44, v44, 2, v1"); a("v_lshlrev_b32 v44, 1, v44"); a("s_lshl_b32 s66, s65, 5")
    a("buffer_load_ushort v45, v44, s[56:59], s66 offen")
    if tailst: stamp(3)
    def sweep2(k):
        for t in (0, 1): a(f"global_load_dwordx4 {vr(64+8*k+4*t)}, v{48+t}, s[28:29] sc1")
    for k in range(FP2-1): sweep2(k)
    a("L_yloop2:")
    for k in range(FP2):
        sweep2((k+FP2-1) % FP2)
        if k == 0: a("s_sub_u32 s77, s77, 1"); a("s_cbranch_scc1 L_exit")
        a(f"s_waitcnt vmcnt({(FP2-1)*2})")
        untag(16, 64+8*k, 8, 32)
        a("s_and_b64 exec, exec, vcc")
        a("s_cbranch_scc1 L_yloop2" if k == FP2-1 else "s_cbranch_scc0 L_ydone")
    a("L_ydone:")
    a("s_mov_b64 exec, -1")
    if tailst: stamp(2)
    add4(16, 16, 20)
    a("v_permlane32_swap_b32 v16, v18"); a("v_permlane32_swap_b32 v17, v19")
    if pk: a("v_pk_add_f32 v[16:17], v[16:17], v[18:19]")
    else: a("v_add_f32 v16, v16, v18"); a("v_add_f32 v17, v17, v19")
    a("v_permlane16_swap_b32 v16, v17")
    a("v_add_f32 v16, v16, v17")
    a("s_cmp_lg_u32 s65, 0")
    for m in ("row_ror:8", "row_ror:4"): a(f"v_add_f32_dpp v16, v16, v16 {m} {DPPF}")
    a("s_mov_b64 exec, s[68:69]")
    a("v_cvt_pk_bf16_f32 v16, v16, v16")
    a("buffer_store_short v16, v44, s[56:59], s66 offen")
    if stamps: a("s_mov_b32 s64, 3")
    a("s_cbranch_scc0 L_epoch")
    a("L_end:")
    if stamps:
        a("s_cmp_eq_u32 s14, 0"); a("s_cselect_b32 s14, s100, 0")
        stamp(9)
        a("s_mov_b64 exec, 1")
        a("s_lshl_b32 s3, s2, 2"); a("s_add_u32 s3, s3, s34"); a("s_lshl_b32 s3, s3, 6"); a("s_add_u32 s3, s3, 0x10000000")
        a("v_mov_b32 v3, s3")
        a("s_getreg_b32 s35, hwreg(HW_REG_XCC_ID)")
        a("s_waitcnt lgkmcnt(0)")
        a("s_getreg_b32 s78, hwreg(HW_REG_HW_ID)")
        vals = [f"s{80+2*k}" for k in range(10)] + ["s35", "s64", "s78", "s77", "s31", "s14"]
        for q in range(4):
            for k in range(4): a(f"v_mov_b32 v{48+4*q+k}, {vals[4*q+k]}")
            a(f"global_store_dwordx4 v3, {vr(48+4*q)}, s[28:29] offset:{16*q}")
    a("L_exit:")
    a("s_endpgm")
    a("L_epoch:")
    a("s_mov_b64 exec, 1")
    for k in range(4): a(f"v_mov_b32 v{28+k}, s{36+k}")
    a("v_mov_b32 v24, 0")
    a("global_store_dwordx4 v24, v[28:31], s[28:29]")
    a(END)
    a("L_ffn:")
    a.wait("ml")
    a("L_hchk:")
    untag(28, 28, 4, 20)
    a("s_cbranch_vccnz L_hretry")
    retry("h", [mlload])
    gcheck("gf")
    a("v_and_b32 v36, 0xffff0000, v36")
    cstage(28, True)
    jitter()
    if tailst: stamp(3)
    a("s_bitcmp1_b32 s34, 0")
    a(f"ds_write_b128 v47, {vr(32)} offset:4096")
    a("s_waitcnt lgkmcnt(0)"); a("s_barrier")
    a("s_cbranch_scc1 L_end")
    a(f"ds_read_b128 {vr(20)}, v47 offset:{4096+1024}")
    a("s_waitcnt lgkmcnt(0)")
    add4(32, 32, 20); mul4(32, 36, 32)
    settag(32)
    pub("ypub", f"global_store_dwordx4 v39, {vr(32)}, s[28:29]", "ffn")
    a(END)
    for lab in ("L_noh", "L_ng1", "L_ng2", "L_nogp", "L_noha") + (("L_nopl",) if RACE else ()):
        end = a.L.index(lab + ":")
        b = [i for i, l in enumerate(a.L) if l.startswith("s_cbranch_scc") and l.endswith(" " + lab)][0]
        body = a.L[b+1:end]
        inv = "s_cbranch_scc1" if a.L[b].startswith("s_cbranch_scc0") else "s_cbranch_scc0"
        a.L[b:end] = [f"{inv} {lab}_do"]
        slow[:0] = [f"{lab}_do:"] + body + [f"s_branch {lab}"]
    for l in slow: a(l)
    body, nn = fix_hazards(a.L)
    out = [HEADER.rstrip("\n"), f"; @launch grid=(256,1,1) block=(256,1,1) lds={LDS}",
           '.amdgcn_target "amdgcn-amd-amdhsa--gfx950"', ".text", f".globl {KN}", ".p2align 12"]
    if pad: out.append(f".fill {pad//4}, 4, 0xbf800000")
    out += [".p2align 8", f".type {KN},@function"]
    out += [l if l.endswith(":") else "    " + l for l in body]
    out += ["L_last:", "    s_endpgm",
            '.section .rodata,"a"', ".p2align 6", f".amdhsa_kernel {KN}",
            "  .amdhsa_next_free_vgpr 256", "  .amdhsa_next_free_sgpr 102", "  .amdhsa_accum_offset 128",
            "  .amdhsa_group_segment_fixed_size 0", "  .amdhsa_kernarg_size 104", "  .amdhsa_user_sgpr_count 2",
            "  .amdhsa_user_sgpr_kernarg_segment_ptr 1", "  .amdhsa_system_sgpr_workgroup_id_x 1", ".end_amdhsa_kernel"]
    return "\n".join(out) + "\n", nn
if __name__ == "__main__":
    s, nn = gen()
    open("g12.s", "w").write(s)
    print("nops inserted", nn)
```

```python
import sys, struct, math
from asmlib import Asm, fix_hazards
KN = "gated_mix__sliding_block_cached__geglu_ffn__decode_kernel"
def f2u(x): return struct.unpack("<I", struct.pack("<f", x))[0]
LOG2E = 1.4426950408889634
TAGM = 0x3ff
AP, OP, HP, GG, YF, YY = 0x10000, 0x50000, 0x90000, 0x98000, 0xa0000, 0x140000
PL = 0x130000
LML, LQ, LDS = 8192, 8256, 8704
DPPF = "row_mask:0xf bank_mask:0xf"
HEADER = open("gated_mix__sliding_block_cached__geglu_ffn__decode.s.ref").read().split("; Override launch")[0]

def gen(D=16, qp=26, DQ=12, PRE=12, KF=1, rot=(5,3), pol="nt", SPIN=200000, ML_AT=6, sync=(16,), FX=0, light5=29,
        FP2=2, YP=0, YT=1, otouch=True, RACE=(4,2), GPOS=22, PREP='st', jit=0, diag=None, REV=1, HM=((1,0,5,3,4,2,6,7),(1,0,2,3,5,4,6,7),(1,0,2,3,4,6,5,7),(1,0,7,3,4,5,6,2)), TH=None, apol=None, AI=(), pf=True, pk=True, pad=0, perm=0, stamps=False, lite=False, tailst=False):
    a = Asm()
    lights = sorted({FX, FX+8, FX+16, FX+24, light5}); assert len(lights) == 5
    remap = tuple(zip([x for x in lights if x < 27], [x for x in range(27, 32) if x not in lights]))
    END = "s_branch L_end" if stamps else "s_endpgm"
    def stamp(k):
        if stamps and not (lite and k not in (0, 6, 9)): a(f"s_memrealtime s[{80+2*k}:{81+2*k}]")
    def vr(b, n=4): return f"v[{b}:{b+n-1}]"
    def ar(b, n=4): return f"a[{b}:{b+n-1}]"
    def untag(dst, src, n, tmp, cc="vcc", t3="s63"):
        for i in range(n): a(f"v_xor_b32 v{dst+i}, {t3 if i%4 == 3 else 's%d' % (60+i%4)}, v{src+i}")
        a(f"v_or_b32 v{tmp}, v{dst}, v{dst+1}")
        for i in range(2, n, 2): a(f"v_or3_b32 v{tmp}, v{tmp}, v{dst+i}, v{dst+i+1}")
        a(f"v_and_b32 v{tmp}, {TAGM}, v{tmp}")
        a(f"v_cmp_ne_u32 {cc}, 0, v{tmp}")
    def settag(dst, t3=11):
        for i in range(4): a(f"v_and_or_b32 v{dst+i}, v{dst+i}, s76, v{8+i if i < 3 else t3}")
    def rnd2(x, y, tmp):
        a(f"v_cvt_pk_bf16_f32 v{tmp}, v{x}, v{y}")
        a(f"v_lshlrev_b32 v{x}, 16, v{tmp}")
        a(f"v_and_b32 v{y}, 0xffff0000, v{tmp}")
    def add4(d, x, y):
        if pk:
            for k in (0, 2): a(f"v_pk_add_f32 {vr(d+k,2)}, {vr(x+k,2)}, {vr(y+k,2)}")
        else:
            for k in range(4): a(f"v_add_f32 v{d+k}, v{x+k}, v{y+k}")
    def bc(s):
        return vr(s & ~1, 2), s & 1
    def mul4(d, s, x):
        if pk:
            p, o = bc(s)
            for k in (0, 2): a(f"v_pk_mul_f32 {vr(d+k,2)}, {p}, {vr(x+k,2)} op_sel:[{o},0] op_sel_hi:[{o},1]")
        else:
            for k in range(4): a(f"v_mul_f32 v{d+k}, v{s}, v{x+k}")
    def fma4(d, s, x, c):
        if pk:
            p, o = bc(s)
            for k in (0, 2): a(f"v_pk_fma_f32 {vr(d+k,2)}, {p}, {vr(x+k,2)}, {vr(c+k,2)} op_sel:[{o},0,0] op_sel_hi:[{o},1,1]")
        else:
            for k in range(4): a(f"v_fma_f32 v{d+k}, v{s}, v{x+k}, v{c+k}")
    slow = []
    njit = [0]
    def jitter():
        if not jit: return
        njit[0] += 1; k = njit[0]
        a(f"s_mul_i32 s101, s2, {4*k*jit+1}"); a(f"s_mul_i32 s100, s34, {2*k+3}"); a("s_add_u32 s101, s101, s100"); a("s_add_u32 s101, s101, s36")
        a(f"s_mul_i32 s101, s101, 0x9e3779b1"); a("s_lshr_b32 s101, s101, 29"); a("s_cmp_lg_u32 s101, 0"); a(f"s_cbranch_scc1 L_jit{k}")
        a("s_sleep 127"); a("s_sleep 127"); a(f"L_jit{k}:")
    def pub(name, text, role):
        a.vmem(text, name, role)
        a("s_bitcmp1_b32 s31, 0"); a(f"s_cbranch_scc1 L_{name}far"); a(f"L_{name}near:")
        slow.extend([f"L_{name}far:", text + " sc1", f"s_branch L_{name}near"])
    def retry(name, loads):
        slow.append(f"L_{name}retry:"); slow.extend(loads)
        slow.extend(["s_sub_u32 s77, s77, 1", "s_waitcnt vmcnt(0)", "s_cbranch_scc1 L_exit", f"s_branch L_{name}chk"])

    stream = [("K", i) for i in range(qp)] + [("q", 0)] + [("K", i) for i in range(qp, 32)] + [("V", i) for i in range(32)] + [("ml", 0)] + [("C", i) for i in range(8)]
    pos = [0]; kfree = [0]
    def vreg(i): return vr(64+4*i) if i < 16 else ar(4*(i-16))
    qloads = [f"global_load_dwordx4 {vr(16+4*e)}, v3, s[28:29] offset:{e*4096-2048} sc1" for e in range(2)]
    guloads = [f"global_load_dwordx4 {vr(48+4*gu)}, v38, s[28:29] offset:{gu*1024} sc1" for gu in range(2)]
    mlload = "global_load_dwordx4 v[28:31], v44, s[28:29] sc1"
    gload = "global_load_dwordx2 v[36:37], v38, s[28:29] sc1"
    def can_issue():
        if pos[0] >= len(stream): return False
        k, i = stream[pos[0]]
        return not (k == "V" and i >= 16 and kfree[0] <= i - 16)
    def issue(n=1):
        for _ in range(n):
            if not can_issue(): return
            k, i = stream[pos[0]]; pos[0] += 1
            if k == "K" or k == "V":
                if TH and TH[1] <= pos[0] < TH[2]:
                    a("s_bitcmp1_b32 s2, 0"); a(f"s_cbranch_scc1 L_th{pos[0]}"); a(f"s_waitcnt vmcnt({TH[0]-1})"); a(f"L_th{pos[0]}:")
                if k == "K": a.vmem(f"buffer_load_dwordx4 {ar(4*i)}, v12, s[44:47], s3 offen {pol}", f"K{i}")
                else: a.vmem(f"buffer_load_dwordx4 {vreg(i)}, v13, s[48:51], s3 offen {pol}", f"V{i}")
                a("s_addk_i32 s3, 4096"); a("s_bitset0_b32 s3, 17")
            elif k == "q":
                a("s_cmp_eq_u32 s34, 1"); a("s_cbranch_scc0 L_noqp")
                for t in qloads: a.vmem(t, "q", "qw")
                a("L_noqp:")
                a("s_cmp_eq_u32 s64, 2"); a("s_cbranch_scc0 L_nogp")
                for t in guloads: a.vmem(t, "gup", "hc")
                a("L_nogp:")
            elif k == "ml":
                if YT == 1: a.vmem("buffer_load_dword v28, v39, s[20:23], 0 offen sc1", "yt")
                if otouch: a.vmem("global_load_dword v28, v45, s[28:29] sc1", "ot")
                a.vmem(gload.replace(" sc1", ""), "gg")
                a.vmem(mlload.replace(" sc1", ""), "ml")
            elif k == "C":
                a.vmem(f"buffer_load_dwordx4 {ar(64+4*i)}, v14, s[52:55], {'s66' if i < 4 else 's67'} offen offset:{(i%4)*1280} {pol}", f"C{i}")
    def ahead(item):
        tgt = stream.index(item) + D
        while pos[0] <= tgt and can_issue(): issue()

    a(f"{KN}:")
    stamp(0)
    if diag is not None: a("s_memrealtime s[80:81]")
    a("s_load_dwordx2 s[44:45], s[0:1], 8")
    a("s_cmpk_ge_u32 s2, 0x100")
    a("s_cbranch_scc1 L_exit")
    if perm == 1:
        a("s_lshr_b32 s3, s2, 3"); a("s_and_b32 s2, s2, 7"); a("s_lshl_b32 s2, s2, 5"); a("s_or_b32 s2, s2, s3")
    if perm == 2:
        a("s_cmp_ge_u32 s2, 224"); a("s_cselect_b32 s3, 1, 0"); a("s_xor_b32 s2, s2, s3")
    if perm >= 16: a(f"s_xor_b32 s2, s2, {perm-16}")
    a("v_lshrrev_b32 v1, 6, v0")
    if pf:
        a("s_getpc_b64 s[30:31]")
        a("L_pc:")
        a("s_lshr_b32 s3, s2, 3"); a("s_lshl_b32 s3, s3, 9")
        a("v_lshl_add_u32 v3, v1, 7, s3")
        a("v_min_u32 v3, L_last-L_pc-256, v3")
        a.vmem("global_load_dword v3, v3, s[30:31] offset:256", "pf")
    a("v_and_b32 v0, 63, v0")
    a("v_readfirstlane_b32 s34, v1")
    a("s_and_b32 s32, s2, 31")
    a("s_lshr_b32 s33, s2, 5")
    a("v_lshrrev_b32 v1, 4, v0")
    a("v_and_b32 v2, 15, v0")
    if HM:
        T = [sum(v << (4*x) for x, v in enumerate(row)) for row in HM]
        assert all(sorted(row) == list(range(8)) for row in HM)
        a(f"s_mov_b32 s52, 0x{T[0]:x}"); a(f"s_mov_b32 s53, 0x{T[1]:x}")
        a("s_bitcmp1_b32 s32, 4"); a(f"s_cselect_b32 s52, 0x{T[2]:x}, s52"); a(f"s_cselect_b32 s53, 0x{T[3]:x}, s53")
        a("s_lshl_b32 s3, s32, 2"); a("s_lshr_b64 s[52:53], s[52:53], s3"); a("s_and_b32 s52, s52, 7"); a("s_and_b32 s65, s32, 24"); a("s_or_b32 s65, s65, s52")
    else: a("s_mov_b32 s65, s32")
    a("s_brev_b32 s46, 16"); a("s_mov_b32 s47, 0x20000"); a("s_mov_b64 s[50:51], s[46:47]")
    a("s_lshr_b32 s3, s33, 2"); a("s_lshl_b32 s3, s3, 5"); a("s_add_u32 s3, s3, s65"); a("s_lshl_b32 s3, s3, 4")
    a("s_or_b32 s67, s33, 12"); a("s_or_b32 s3, s3, s67"); a("s_lshl_b32 s3, s3, 7"); a("s_add_u32 s3, s3, s34"); a("s_lshl_b32 s3, s3, 10")
    a("v_lshl_add_u32 v12, v2, 2, v1"); a("v_lshl_add_u32 v12, v12, 4, s3")
    a("v_lshl_add_u32 v13, v0, 4, s3")
    a(f"s_mul_i32 s3, s32, {rot[0]}"); a(f"s_mul_i32 s67, s33, {rot[1]}"); a("s_add_u32 s3, s3, s67")
    a("s_and_b32 s3, s3, 31"); a("s_lshl_b32 s3, s3, 12")
    assert FX == 0
    l5 = (light5 >> 3)*7 + (light5 & 7) - 1
    a("s_lshr_b32 s41, s32, 3"); a("s_sub_u32 s40, s32, s41"); a("s_sub_u32 s40, s40, 1")
    a("s_cmp_eq_u32 s32, 31"); a(f"s_cselect_b32 s40, {l5}, s40"); a(f"s_cmp_eq_u32 s32, {light5}"); a("s_cselect_b32 s40, 27, s40")
    a("s_and_b32 s41, s32, 7"); a("s_cselect_b32 s40, s40, 28")
    a("s_lshr_b32 s35, s33, 1"); a("s_lshl_b32 s35, s35, 2"); a("s_add_u32 s35, s35, s34"); a("s_mulk_i32 s35, 40")
    a("v_mad_u32_u24 v40, v1, 10, s35")
    a("s_and_b32 s41, s33, 1")
    a("s_lshl_b32 s78, s65, 1"); a("s_add_u32 s78, s78, s41"); a("s_lshl_b32 s78, s78, 7"); a("s_lshl_b32 s79, s40, 7")
    a("s_mov_b32 vcc_lo, 0xff00ff00"); a("s_mov_b32 vcc_hi, vcc_lo")
    a("v_mov_b32 v38, 0x2000"); a("v_mov_b32 v39, 3456"); a("v_cndmask_b32 v38, v38, v39, vcc"); a("v_mov_b32 v39, 0")
    a("v_mov_b32 v41, s78"); a("v_mov_b32 v42, s79"); a("v_cndmask_b32 v41, v41, v42, vcc")
    a("v_and_b32 v42, 7, v2"); a("v_lshl_add_u32 v41, v42, 4, v41"); a("v_mad_u32_u24 v36, v40, v38, v41"); a("v_mov_b32 v37, 0")
    a("v_lshrrev_b32 v44, 3, v2"); a("v_mul_u32_u24 v44, 1280, v44"); a("v_lshl_add_u32 v44, v40, 1, v44")
    if REV:
        a("s_cmp_eq_u32 s41, 0"); a("s_cbranch_scc1 L_fwd")
        a("v_mad_u32_u24 v36, v38, 9, v36"); a("v_sub_u32 v38, 0, v38"); a("v_mov_b32 v39, -1")
        a("L_fwd:")
    a("s_waitcnt lgkmcnt(0)")
    stamp(1)
    a("s_load_dwordx16 s[4:19], s[0:1], 0")
    issue(KF)
    a("s_waitcnt lgkmcnt(0)")
    a("s_load_dwordx8 s[20:27], s[0:1], 64")
    a("s_load_dwordx2 s[28:29], s[0:1], 96")
    a("s_cmp_eq_u32 s41, 0"); a("s_cselect_b64 s[16:17], s[16:17], s[18:19]")
    a("v_mov_b32 v34, s10"); a("v_mov_b32 v35, s11"); a("v_mov_b32 v32, s16"); a("v_mov_b32 v33, s17")
    a("v_cndmask_b32 v34, v34, v32, vcc"); a("v_cndmask_b32 v35, v35, v33, vcc")
    a("s_not_b64 s[42:43], vcc"); a("s_cmp_ge_u32 s40, 27"); a("s_cselect_b64 s[42:43], s[42:43], -1")
    a("v_lshl_add_u64 v[36:37], v[36:37], 0, v[34:35]")
    a("s_mov_b64 exec, s[42:43]")
    for t in range(10):
        a.vmem(f"global_load_dwordx4 {vr(64+4*t)}, v[36:37], off {pol if apol is None else apol}", f"A{t}")
        if t < 9: a("v_lshl_add_u64 v[36:37], v[36:37], 0, v[38:39]")
        if t in AI:
            a("s_mov_b64 exec, -1"); issue(); a("s_mov_b64 exec, s[42:43]")
    a("s_mov_b64 exec, -1")
    a.vmem("global_load_dwordx4 v[16:19], v44, s[4:5]", "x0")
    a.vmem("global_load_dword v20, v44, s[4:5] offset:16", "x1")
    a("s_mov_b64 s[48:49], s[8:9]")
    a("s_waitcnt lgkmcnt(0)")
    a("s_load_dwordx4 s[36:39], s[28:29], 0")
    a("s_lshl_b32 s14, s2, 2"); a("s_add_u32 s14, s14, s34"); a(f"s_sub_u32 s14, s14, {((224+FX) << 2) + 2}")
    if RACE:
        a(f"s_cmp_eq_u32 s14, {4 if PREP == 'ld' else 32}"); a("s_cbranch_scc0 L_nopl")
        if PREP == 'st4':
            a("v_and_b32 v55, 7, v0"); a("v_lshlrev_b32 v55, 4, v55"); a("v_lshrrev_b32 v54, 3, v0"); a("v_lshl_add_u32 v55, v54, 8, v55"); a(f"v_add_u32 v55, {PL}, v55")
            for k in range(4): a(f"v_mov_b32 v{56+k}, 0")
            a.vmem("global_store_dwordx4 v55, v[56:59], s[28:29] sc1", "pl", "pl")
            a("v_add_u32 v55, 0x2000, v55")
            a.vmem("global_store_dwordx4 v55, v[56:59], s[28:29] sc1", "pl", "pl")
        else:
            a("v_and_b32 v55, 7, v0"); a("v_lshlrev_b32 v55, 8, v55"); a("v_lshrrev_b32 v54, 3, v0"); a("v_lshl_add_u32 v55, v54, 13, v55"); a(f"v_add_u32 v55, {PL}, v55")
            a("v_mov_b32 v54, 0"); a("s_mov_b64 exec, 0xffff")
            a.vmem("global_store_dword v55, v54, s[28:29] sc1" if PREP == 'st' else "global_load_dword v55, v55, s[28:29]", "pl", "pl")
            a("s_mov_b64 exec, -1")
        a("L_nopl:")
    issue(3)
    a("v_mul_u32_u24 v14, 20480, v1"); a("v_lshl_add_u32 v14, v2, 4, v14")
    a("s_mov_b32 s55, 0x20000"); a("s_mov_b32 s77, %d" % SPIN); a("s_movk_i32 s76, 0x%x" % (0xffff ^ TAGM))
    a("s_cmp_ge_u32 s33, 5"); a("s_cbranch_scc1 L_role1")
    a("s_mov_b32 s64, 0")
    a("s_mov_b64 s[52:53], s[12:13]"); a("s_mov_b32 s54, %d" % (4096*1280))
    a("s_lshl_b32 s66, s65, 1"); a("s_and_b32 s78, s34, 1"); a("s_add_u32 s66, s66, s78"); a("s_lshl_b32 s66, s66, 4"); a("s_lshr_b32 s78, s34, 1"); a("s_add_u32 s66, s66, s78"); a("s_mulk_i32 s66, %d" % (4*1280))
    a("s_mov_b32 s65, s33")
    a("s_branch L_role2")
    a("L_role1:")
    a("s_mov_b64 s[52:53], s[20:21]"); a("s_mov_b32 s54, 0"); a("s_mov_b32 s64, 3")
    a("s_mov_b32 s65, 0"); a("s_mov_b32 s66, 0")
    a("s_cmp_ge_u32 s40, 27"); a("s_cbranch_scc1 L_role2")
    a("s_mov_b32 s64, 2")
    a("s_sub_u32 s78, s33, 5"); a("s_lshl_b32 s78, s78, 2"); a("s_add_u32 s78, s78, s34")
    a("s_cmp_ge_u32 s78, 10"); a("s_cbranch_scc1 L_role2")
    a("s_lshr_b32 s65, s78, 1")
    a("s_lshl_b32 s66, s40, 4"); a("s_and_b32 s79, s78, 1"); a("s_add_u32 s66, s66, s79"); a("s_mulk_i32 s66, %d" % (4*1280))
    a("s_mov_b32 s64, 1"); a("s_mov_b32 s54, %d" % (1728*1280))
    a("L_role2:")
    a("s_lshl_b32 s78, s65, 8"); a("s_add_u32 s66, s66, s78"); a("s_add_u32 s67, s66, 10240")
    a("s_mov_b64 s[56:57], s[24:25]"); a("s_movk_i32 s58, 2560"); a("s_mov_b32 s59, 0x20000")
    a("s_sub_u32 s15, 7, s33"); a("s_mul_i32 s15, s15, 3"); a("s_add_u32 s15, s15, s34"); a("s_sub_u32 s15, s15, 1")
    a("s_cmp_eq_u32 s34, 0"); a("s_cselect_b32 s15, 63, s15")
    a("s_and_b32 s78, s32, 7"); a(f"s_cmp_eq_u32 s78, {FX}"); a("s_cselect_b32 s15, s15, 63")
    issue(3)
    a("s_mov_b32 s31, 0")
    a("v_and_b32 v8, 3, v2"); a("v_lshlrev_b32 v8, 4, v8")
    a("v_mov_b32 v10, 0xffff"); a("v_mov_b32 v11, 0")
    a("v_lshlrev_b64 v[10:11], v8, v[10:11]")
    a("s_mov_b32 vcc_lo, 0x0f0f0f0f"); a("s_mov_b32 vcc_hi, vcc_lo")
    a("v_cndmask_b32 v4, 0, v10, vcc"); a("v_cndmask_b32 v5, 0, v11, vcc")
    a("v_xor_b32 v6, v4, v10"); a("v_xor_b32 v7, v5, v11")
    a("v_lshlrev_b32 v15, 4, v0")
    a("s_mov_b32 s68, 0x000f000f"); a("s_mov_b32 s69, s68")
    for t in range(1, 4): a(f"s_lshl_b64 s[{68+2*t}:{69+2*t}], s[68:69], {4*t}")
    a("s_mov_b32 s78, 0x01000100"); a("s_mov_b32 s79, 0x03020302")
    if REV: a("s_cmp_eq_u32 s41, 0"); a("s_cselect_b32 s78, s78, 0x07060706"); a("s_cselect_b32 s79, s79, 0x05040504")
    a("s_lshl_b32 s35, s34, 10"); a("v_lshl_add_u32 v47, v0, 4, s35")
    a("v_mov_b32 v52, 0"); a("v_mov_b32 v53, 0"); a("s_lshl_b32 s35, s34, 3"); a("v_mov_b32 v54, s35")
    a(f"ds_write_b64 v54, v[52:53] offset:{LML}")
    while pos[0] < PRE + KF + len(AI): issue()
    a.wait("x1")
    stamp(2)
    for t in range(11):
        if t < 10:
            A = 56 + 4*(t % 2)
            a(f"v_perm_b32 v21, v{16+(9-t)//2}, v{16+t//2}, {'s79' if t % 2 else 's78'}")
            for q in range(4): a(f"v_and_b32 v{A+q}, v21, v{4+q}")
        if t > 0: a(f"v_mfma_f32_16x16x32_bf16 {vr(32)}, {vr(56+4*((t-1)%2))}, {vr(64+4*(t-1))}, {'0' if t == 1 else vr(32)}")
    issue()
    a(f"ds_write_b128 v47, {vr(32)}")
    a("s_waitcnt lgkmcnt(0)"); a("s_barrier")
    for i in range(4): a(f"s_add_u32 s{36+i}, s{36+i}, 1")
    a("s_lshr_b32 s61, s36, 10"); a("s_add_u32 s61, s61, s36"); a("s_lshr_b32 s62, s36, 20"); a("s_add_u32 s62, s62, s36")
    for i, src in enumerate(("s36", "s61", "s62", "s39")):
        a(f"s_andn2_b32 s{60+i}, {src}, s76"); a(f"v_mov_b32 v{8+i}, s{60+i}")
    a("s_getreg_b32 s30, hwreg(HW_REG_XCC_ID, 0, 4)")
    a("s_lshl_b32 s35, s39, 4"); a("s_or_b32 s30, s30, s35"); a("s_andn2_b32 s30, s30, s76")
    a("s_lshl_b32 s35, s32, 3"); a("s_add_u32 s35, s35, s33"); a("s_lshl_b32 s35, s35, 10"); a(f"s_add_u32 s35, s35, {AP}")
    a("v_add_u32 v36, s35, v15")
    jitter()
    a("s_cmp_eq_u32 s34, 1"); a("s_cbranch_scc0 L_noApub")
    a("v_lshlrev_b32 v3, 4, v0")
    for p, o in enumerate((0, 2048, 3072)): a(f"ds_read_b128 {vr(16+4*p)}, v3 offset:{o}")
    a("s_mov_b32 vcc_lo, 0xff00ff00"); a("s_mov_b32 vcc_hi, vcc_lo"); a("v_mov_b32 v3, s30"); a("v_cndmask_b32 v3, v3, v11, vcc")
    a("s_waitcnt lgkmcnt(0)")
    add4(32, 16, 32); add4(20, 20, 24); add4(32, 32, 20)
    settag(32, 3)
    a("s_mov_b64 exec, s[42:43]")
    a.vmem(f"global_store_dwordx4 v36, {vr(32)}, s[28:29]", "Apub", "qw")
    a("s_mov_b64 exec, -1")
    a("L_noApub:")
    stamp(3)
    issue(2)
    a("s_lshl_b32 s35, s32, 13"); a(f"s_add_u32 s35, s35, {AP+128}")
    a("s_and_b32 s78, s34, 1"); a("s_lshl_b32 s78, s78, 8"); a("s_add_u32 s78, s78, s35")
    a("v_and_b32 v40, 3, v2"); a("v_lshlrev_b32 v38, 11, v40"); a("v_lshrrev_b32 v16, 3, v2"); a("v_lshl_add_u32 v38, v16, 9, v38"); a("v_lshl_add_u32 v38, v1, 5, v38")
    a("v_and_b32 v16, 4, v2"); a("v_lshl_add_u32 v38, v16, 2, v38"); a("v_add_u32 v38, s78, v38")
    a("s_lshr_b32 s78, s33, 2"); a("s_lshl_b32 s78, s78, 9"); a("s_add_u32 s35, s35, s78"); a(f"s_addk_i32 s35, {2048-128}")
    a("v_and_b32 v16, 8, v2"); a("v_and_b32 v17, 7, v2")
    a("v_lshl_add_u32 v3, v1, 6, v2"); a("v_add_u32 v3, v3, v16"); a("v_lshl_add_u32 v3, v3, 4, s35")
    a("v_lshl_add_u32 v39, v17, 4, v16"); a("v_and_b32 v17, 1, v1"); a("v_lshl_add_u32 v39, v17, 7, v39"); a("v_lshrrev_b32 v17, 1, v1"); a("v_lshl_add_u32 v39, v17, 2, v39")
    a("v_lshlrev_b32 v40, 6, v40"); a("v_lshl_add_u32 v40, v1, 4, v40")
    assert pos[0] <= stream.index(("q", 0))
    tgt = stream.index(("q", 0)) + DQ
    XR, WR = (48, 52, 16), (56, 60, 20)
    a("s_cmp_eq_u32 s14, 0"); a("s_cbranch_scc0 L_ng1")
    a("v_and_b32 v41, 31, v0"); a("v_lshlrev_b32 v41, 4, v41"); a("v_lshrrev_b32 v42, 5, v0"); a("v_mul_u32_u24 v42, 1280, v42"); a("v_add_u32 v42, v42, v41")
    for k in range(8): a(f"v_mov_b32 v{16+k}, 0")
    for k in range(3):
        if k == 2: a("s_mov_b32 exec_lo, 0xffff"); a("s_mov_b32 exec_hi, exec_lo")
        a.vmem(f"global_load_dwordx4 {vr(XR[k])}, v42, s[4:5] offset:{512*k}", "fx", "gc")
        a.vmem(f"global_load_dwordx4 {vr(WR[k])}, v41, s[22:23] offset:{512*k}", "fx", "gc")
    a("s_mov_b64 exec, -1")
    a("L_ng1:")
    while pos[0] < GPOS + 8 and pos[0] <= tgt and can_issue(): issue()
    a("s_cmp_eq_u32 s14, 0"); a("s_cbranch_scc0 L_ng2")
    a("s_mov_b32 s41, 0")
    if RACE:
        RN, SH = RACE
        a(f"s_mov_b32 s78, {PL}"); a(f"s_mov_b32 s79, {PL+0x2000}")
        for sh in range(SH):
            A = [16+k for k in range(RN)]; B = [6+k for k in range(RN)]
            for r in A + B: a(f"s_mov_b32 s{r}, -1")
            a("s_mov_b32 s35, 48")
            for k in range(RN):
                pair = [(A[k], "s78"), (B[k], "s79")]
                if (k + sh) % 2: pair.reverse()
                for r, o in pair: a(f"s_load_dword s{r}, s[28:29], {o}")
                a("s_addk_i32 s78, 256"); a("s_addk_i32 s79, 256")
            a(f"L_rc{sh}:")
            a("s_mov_b64 s[10:11], 0")
            for k in range(RN):
                chk = [(A[k], "s10"), (B[k], "s11")]
                if k % 2: chk.reverse()
                for r, c in chk: a(f"s_cmp_eq_u32 s{r}, -1"); a(f"s_addc_u32 {c}, {c}, 0")
            a("s_add_u32 s41, s41, s10"); a("s_sub_u32 s41, s41, s11")
            a("s_sub_u32 s35, s35, 1"); a(f"s_cbranch_scc1 L_rd{sh}")
            a("s_or_b32 s10, s10, s11"); a(f"s_cbranch_scc1 L_rc{sh}")
            a(f"L_rd{sh}:"); a("s_waitcnt lgkmcnt(0)")
        if stamps: a("s_add_u32 s100, s41, 0x14000")
        a("s_cmp_gt_i32 s41, 0"); a("s_cselect_b32 s41, 1, 0")
    a.wait("fx", "gc")
    first = True
    for xb, wb in zip(XR, WR):
        for k in range(4):
            x, w = xb+k, wb+k
            a(f"v_lshlrev_b32 v43, 16, v{x}"); a(f"v_lshlrev_b32 v41, 16, v{w}"); a("v_mul_f32 v43, v43, v41")
            a(f"v_and_b32 v{x}, 0xffff0000, v{x}"); a(f"v_and_b32 v{w}, 0xffff0000, v{w}"); a(f"v_mul_f32 v41, v{x}, v{w}")
            rnd2(43, 41, x)
            if first: a("v_add_f32 v42, v43, v41")
            else: a("v_add_f32 v42, v42, v43"); a("v_add_f32 v42, v42, v41")
            first = False
    for m in ("quad_perm:[1,0,3,2]", "quad_perm:[2,3,0,1]", "row_half_mirror", "row_mirror"):
        a(f"v_add_f32_dpp v42, v42, v42 {m} {DPPF}")
    a("v_add_f32_dpp v42, v42, v42 row_bcast:15 row_mask:0xa bank_mask:0xf")
    a("v_cvt_pk_bf16_f32 v42, v42, v42"); a("v_lshlrev_b32 v42, 16, v42")
    a(f"v_mul_f32 v42, 0x{f2u(-LOG2E):x}, v42"); a("v_exp_f32 v42, v42"); a("v_add_f32 v42, 1.0, v42"); a("v_rcp_f32 v42, v42")
    a("v_cvt_pk_bf16_f32 v42, v42, v42"); a("v_lshlrev_b32 v42, 16, v42")
    a("v_sub_f32 v43, 1.0, v42"); a("v_cvt_pk_bf16_f32 v48, v42, v43")
    a("s_lshl_b32 s35, s38, 1"); a("s_or_b32 s35, s35, s41"); a("v_mov_b32 v49, s35")
    a("v_lshrrev_b32 v52, 5, v0"); a("v_lshlrev_b32 v52, 3, v52"); a(f"v_add_u32 v52, {GG}, v52")
    if jit:
        for _ in range(6): a("s_sleep 127")
    a("s_brev_b32 exec_lo, 1"); a("s_mov_b32 exec_hi, exec_lo")
    a.vmem("global_store_dwordx2 v52, v[48:49], s[28:29] sc1", "gpub", "gc")
    a("s_mov_b64 exec, -1")
    a("L_ng2:")
    while pos[0] <= tgt and can_issue(): issue()
    a("s_cmp_eq_u32 s34, 1"); a("s_cbranch_scc0 L_noq")
    a.wait("q", "qw")
    a("L_qchk:")
    untag(16, 16, 8, 37, t3="s30")
    a("s_cbranch_vccnz L_qslow")
    a("L_qok:")
    slow.extend(["L_qslow:", "s_bitcmp1_b32 s31, 1", "s_cbranch_scc1 L_qs1", "s_bitset1_b32 s31, 1", "s_mov_b64 exec, s[42:43]",
                 f"global_store_dwordx4 v36, {vr(32)}, s[28:29] sc1", "s_mov_b64 exec, -1", "L_qs1:"])
    slow.extend([f"v_and_b32 v{19+4*i}, -16, v{19+4*i}" for i in range(2)])
    slow.extend(["v_or_b32 v37, v16, v17"] + [f"v_or3_b32 v37, v37, v{16+i}, v{17+i}" for i in range(2, 8, 2)])
    slow.extend([f"v_and_b32 v37, {TAGM}, v37", "v_cmp_ne_u32 vcc, 0, v37", "s_cbranch_vccnz L_qretry", "s_bitset1_b32 s31, 0", "s_branch L_qok"])
    retry("q", qloads)
    add4(16, 16, 20)
    a("v_mov_b32 v20, s31"); a("v_mov_b32 v21, 0")
    a("v_permlane32_swap_b32 v16, v18"); a("v_permlane32_swap_b32 v17, v19")
    a("v_add_f32 v16, v16, v18"); a("v_add_f32 v17, v17, v19")
    a("v_cvt_pk_bf16_f32 v16, v16, v17")
    a(f"ds_write_b32 v21, v20 offset:{LQ+256}")
    a(f"ds_write_b32 v39, v16 offset:{LQ}")
    a("s_waitcnt lgkmcnt(0)")
    a("L_noq:")
    a("s_barrier")
    stamp(4)
    a("v_mov_b32 v21, 0")
    a(f"ds_read_b128 v[24:27], v40 offset:{LQ}")
    a(f"ds_read_b32 v20, v21 offset:{LQ+256}")
    issue()
    a("s_waitcnt lgkmcnt(0)")
    a("v_readfirstlane_b32 s31, v20")
    jitter()
    a("s_cmp_eq_u32 s64, 2"); a("s_cbranch_scc0 L_noh")
    a.wait("gup", "hc")
    a("L_gchk:")
    untag(48, 48, 8, 37)
    a("s_cbranch_vccnz L_gretry")
    retry("g", guloads)
    for qpm in ("[1,0,3,2]", "[2,3,0,1]"):
        for k in range(8): a(f"v_add_f32_dpp v{48+k}, v{48+k}, v{48+k} quad_perm:{qpm} {DPPF}")
    rnd2(48, 49, 56); rnd2(50, 51, 57); rnd2(52, 53, 58); rnd2(54, 55, 59)
    c1 = -2*math.sqrt(2/math.pi)*LOG2E; c2 = c1*0.044715
    a(f"v_mov_b32 v60, 0x{f2u(c1):x}"); a(f"s_mov_b32 s35, 0x{f2u(c2):x}")
    for k in range(4): a(f"v_mul_f32 v{56+k}, v{48+k}, v{48+k}")
    for k in range(4): a(f"v_fma_f32 v{56+k}, v{56+k}, s35, v60")
    for k in range(4): a(f"v_mul_f32 v{56+k}, v{56+k}, v{48+k}")
    for k in range(4): a(f"v_exp_f32 v{56+k}, v{56+k}")
    for k in range(4): a(f"v_add_f32 v{56+k}, 1.0, v{56+k}")
    for k in range(4): a(f"v_rcp_f32 v{56+k}, v{56+k}")
    for k in range(4): a(f"v_mul_f32 v{48+k}, v{48+k}, v{56+k}")
    rnd2(48, 49, 56); rnd2(50, 51, 57)
    for k in range(4): a(f"v_mul_f32 v{48+k}, v{48+k}, v{52+k}")
    rnd2(48, 49, 56); rnd2(50, 51, 57)
    for k in range(4): a(f"v_or_b32 v{48+k}, v{48+k}, v{8+k}")
    a("s_lshl_b32 s35, s32, 1"); a("s_and_b32 s78, s34, 1"); a("s_add_u32 s35, s35, s78"); a("s_lshl_b32 s35, s35, 8"); a(f"s_add_u32 s35, s35, {HP}")
    a("v_and_b32 v52, 8, v2"); a("v_lshlrev_b32 v52, 4, v52"); a("v_and_b32 v53, 4, v2"); a("v_lshl_add_u32 v52, v53, 2, v52"); a("v_lshl_add_u32 v52, v1, 5, v52")
    a("v_add_u32 v52, s35, v52")
    a("s_mov_b32 exec_lo, 0x11111111"); a("s_mov_b32 exec_hi, exec_lo")
    pub("hpub", "global_store_dwordx4 v52, v[48:51], s[28:29]", "hc")
    a("s_mov_b64 exec, -1")
    a("L_noh:")
    QB = (32, 36, 40, 60)
    for t in range(4):
        for i in range(4): a(f"v_cndmask_b32_e64 v{QB[t]+i}, 0, v{24+i}, s[{68+2*t}:{69+2*t}]")
    issue()
    def qk_mfma(p):
        L = []
        for t in range(4):
            for uu in range(2):
                u = 2*p + uu; d = 16 + 8*(p % 2) + 4*uu
                L.append(f"v_mfma_f32_16x16x32_bf16 {vr(d)}, {ar(16*u+4*t)}, {vr(QB[t])}, {'0' if t == 0 else vr(d)}")
        return L
    def qk_red(p):
        L = []
        for jj in range(4):
            for uu in range(2):
                u = 2*p + uu; d = 16 + 8*(p % 2) + 4*uu
                if jj == 0: L.append(f"v_mov_b32_dpp v{48+u}, v{d} quad_perm:[0,0,0,0] {DPPF}")
                else: L.append(f"v_add_f32_dpp v{48+u}, v{d+jj}, v{48+u} quad_perm:[{jj},{jj},{jj},{jj}] {DPPF}")
        u = 48 + 2*p
        L += [f"v_cvt_pk_bf16_f32 v56, v{u}, v{u+1}", f"v_lshlrev_b32 v{u}, 16, v56", f"v_and_b32 v{u+1}, 0xffff0000, v56",
              f"v_mul_f32 v{u}, 0x{f2u(128**-0.5):x}, v{u}", f"v_mul_f32 v{u+1}, 0x{f2u(128**-0.5):x}, v{u+1}",
              f"v_cvt_pk_bf16_f32 v56, v{u}, v{u+1}", f"v_lshlrev_b32 v{u}, 16, v56", f"v_and_b32 v{u+1}, 0xffff0000, v56"]
        return L
    for p in range(5):
        M = qk_mfma(p) if p < 4 else []
        R = qk_red(p-1) if p > 0 else []
        if p < 4:
            ahead(("K", 8*p+7)); a.wait(f"K{8*p+7}")
        for m in M[:4]: a(m)
        M = M[4:]
        while M or R:
            for _ in range(4):
                if R: a(R.pop(0))
            if M: a(M.pop(0))
        kfree[0] = min(32, 8*(p+1))
        issue()
    a("v_max3_f32 v16, v48, v49, v50"); a("v_max3_f32 v17, v51, v52, v53"); a("v_max3_f32 v16, v16, v54, v55"); a("v_max_f32 v16, v16, v17")
    a(f"v_max_f32_dpp v16, v16, v16 row_ror:8 {DPPF}"); a(f"v_max_f32_dpp v16, v16, v16 row_ror:4 {DPPF}")
    a("v_max_f32_dpp v16, v16, v16 row_bcast:15 row_mask:0xa bank_mask:0xf")
    a("v_max_f32_dpp v16, v16, v16 row_bcast:31 row_mask:0xc bank_mask:0xf")
    a(f"v_mov_b32 v17, 0x{f2u(LOG2E):x}")
    a("v_mul_f32 v16, v17, v16")
    a("v_readlane_b32 s35, v16, 63")
    for u in range(8): a(f"v_fma_f32 v{48+u}, v{48+u}, v17, -s35")
    for u in range(8): a(f"v_exp_f32 v{48+u}, v{48+u}")
    a("v_add_f32 v18, v48, v49"); a("v_add_f32 v19, v50, v51"); a("v_add_f32 v20, v52, v53"); a("v_add_f32 v21, v54, v55")
    a("v_add_f32 v18, v18, v19"); a("v_add_f32 v20, v20, v21"); a("v_add_f32 v17, v18, v20")
    issue()
    for u in range(8): a(f"v_cvt_pk_bf16_f32 v{48+u}, v{48+u}, v{48+u}")
    a(f"v_add_f32_dpp v17, v17, v17 row_ror:8 {DPPF}"); a(f"v_add_f32_dpp v17, v17, v17 row_ror:4 {DPPF}")
    a("v_add_f32_dpp v17, v17, v17 row_bcast:15 row_mask:0xa bank_mask:0xf")
    a("v_add_f32_dpp v17, v17, v17 row_bcast:31 row_mask:0xc bank_mask:0xf")
    a("s_lshl_b32 s35, s34, 3"); a("v_mov_b32 v18, s35")
    a("s_mov_b32 exec_lo, 0"); a("s_brev_b32 exec_hi, 1")
    a(f"ds_write_b64 v18, v[16:17] offset:{LML}")
    a("s_mov_b64 exec, -1")
    stamp(5)
    a("v_lshrrev_b32 v44, 3, v2"); a("v_and_b32 v45, 3, v2"); a("v_lshl_add_u32 v44, v44, 2, v45")
    a("s_lshl_b32 s35, s32, 13"); a(f"s_add_u32 s35, s35, {OP}"); a("v_lshl_add_u32 v44, v44, 10, s35")
    a("v_and_b32 v46, 4, v2"); a("v_lshlrev_b32 v46, 2, v46"); a("v_lshl_add_u32 v46, v1, 5, v46"); a("s_lshl_b32 s78, s34, 7"); a("v_add3_u32 v45, v46, s78, v44")
    a("v_add_u32 v44, 512, v44")
    a("s_cmp_eq_u32 s64, 1"); a("s_cbranch_scc0 L_noha")
    a("s_lshl_b32 s78, s32, 1"); a("s_and_b32 s79, s34, 1"); a("s_add_u32 s78, s78, s79"); a("s_lshl_b32 s78, s78, 8"); a(f"s_add_u32 s78, s78, {HP}")
    a("v_and_b32 v44, 8, v2"); a("v_lshlrev_b32 v44, 4, v44"); a("v_add3_u32 v44, v44, s78, v46")
    a("L_noha:")
    a("s_lshl_b32 s78, s33, 10"); a("s_add_u32 s35, s35, s78"); a("v_add_u32 v46, s35, v15")
    a("s_lshl_b32 s35, s65, 16"); a(f"s_add_u32 s35, s35, {YY + YP}")
    a("s_lshr_b32 s79, s32, 3"); a("s_lshl_b32 s79, s79, 14"); a("s_add_u32 s35, s35, s79")
    a("s_and_b32 s79, s32, 7"); a("s_lshl_b32 s79, s79, 10"); a("s_add_u32 s35, s35, s79")
    a("s_and_b32 s79, s32, 14"); a("s_lshl_b32 s79, s79, 6"); a("s_add_u32 s35, s35, s79")
    a("v_xor_b32 v3, s35, v15")
    a("s_lshl_b32 s35, s32, 3"); a("s_add_u32 s35, s35, s65"); a("s_lshl_b32 s35, s35, 10"); a(f"s_add_u32 s35, s35, {YF}")
    a("v_add_u32 v39, s35, v15")
    a("s_mov_b64 s[20:21], s[28:29]"); a("s_mov_b32 s23, 0x20000")
    a("s_cmp_lt_u32 s40, 27"); a("s_cselect_b32 s22, 0x200000, 0"); a("s_cselect_b64 s[24:25], s[60:61], 0"); a("s_cselect_b64 s[26:27], s[62:63], 0")
    a("s_cmp_eq_u32 s34, 0"); a("s_cselect_b32 s22, s22, 0")
    a("v_lshrrev_b32 v38, 5, v0"); a("v_lshlrev_b32 v38, 3, v38"); a(f"v_add_u32 v38, {GG}, v38"); a("s_lshl_b32 s41, s38, 1")
    for i in range(32):
        u, t = i >> 2, i & 3
        A = 56 + 4*(i % 2)
        for q in range(4): a(f"v_and_b32_dpp v{A+q}, v{48+u}, v{4+q} row_newbcast:{4*t} {DPPF}")
        if i in sync: a("s_barrier")
        ahead(("V", i))
        if i == 31:
            while can_issue(): issue()
        if i in (2, 20, 31): jitter()
        if i == ML_AT:
            a("s_cmp_lg_u32 s34, 0"); a("s_cbranch_scc1 L_noml")
            a("v_mov_b32 v16, 0")
            a("L_mlw:")
            a(f"ds_read_b128 v[20:23], v16 offset:{LML}"); a(f"ds_read_b128 v[24:27], v16 offset:{LML+16}")
            a("s_sub_u32 s77, s77, 1"); a("s_cbranch_scc1 L_exit")
            a("s_waitcnt lgkmcnt(0)")
            a("v_min3_u32 v17, v23, v25, v27"); a("v_cmp_eq_u32 vcc, 0, v17"); a("s_cbranch_vccnz L_mlw")
            a("v_max3_f32 v16, v20, v22, v24"); a("v_max_f32 v16, v16, v26")
            for w in range(4): a(f"v_sub_f32 v{40+w}, v{20+2*w}, v16")
            for w in range(4): a(f"v_exp_f32 v{40+w}, v{40+w}")
            a("v_mul_f32 v18, v40, v21"); a("v_fmac_f32 v18, v41, v23"); a("v_fmac_f32 v18, v42, v25"); a("v_fmac_f32 v18, v43, v27")
            a("v_mov_b32 v17, s36"); a("v_mov_b32 v19, s37")
            a("s_mov_b64 exec, 0xff")
            pub("mlpub", "global_store_dwordx4 v46, v[16:19], s[28:29] offset:512", "lead")
            a("s_mov_b64 exec, -1")
            a("L_noml:")
        a.wait(f"V{i}")
        if i == 31: stamp(6)
        a(f"v_mfma_f32_16x16x32_bf16 {vr(32)}, {vr(A)}, {vreg(i)}, {'0' if i == 0 else vr(32)}")
    a("s_cmp_lg_u32 s34, 0")
    a(f"ds_write_b128 v47, {vr(32)}")
    a("s_waitcnt lgkmcnt(0)"); a("s_barrier")
    a("s_cbranch_scc1 L_noopub")
    for p in range(1, 4): a(f"ds_read_b128 {vr(12+4*p)}, v47 offset:{p*1024}")
    mul4(32, 40, 32)
    a("s_mov_b32 exec_hi, 0")
    a("s_waitcnt lgkmcnt(0)")
    for p in range(1, 4): fma4(32, 40+p, 12+4*p, 32)
    settag(32)
    pub("opub", f"global_store_dwordx4 v46, {vr(32)}, s[28:29]", "lead")
    a("s_mov_b32 exec_hi, -1")
    a("L_noopub:")
    jitter()
    stamp(7)
    a("s_cmp_eq_u32 s64, 0"); a("s_cbranch_scc0 L_notwo")
    oload = "global_load_dwordx4 v[16:19], v45, s[28:29] sc1"
    a("s_barrier")
    if YT == 2: a.vmem("buffer_load_dword v52, v39, s[20:23], 0 offen sc1", "yt", "wo")
    a.vmem(oload, "op", "wo")
    a.wait("ml", "wo")
    a("L_mchk:")
    a("v_xor_b32 v29, s36, v29"); a("v_xor_b32 v31, s37, v31"); a("v_or_b32 v29, v29, v31"); a("v_cmp_ne_u32 vcc, 0, v29")
    a("s_cbranch_vccnz L_mretry")
    retry("m", [mlload])
    a(f"v_max_f32_dpp v29, v28, v28 quad_perm:[1,0,3,2] {DPPF}"); a(f"v_max_f32_dpp v29, v29, v29 quad_perm:[2,3,0,1] {DPPF}")
    a("v_sub_f32 v28, v28, v29"); a("v_exp_f32 v28, v28"); a("v_mul_f32 v30, v30, v28")
    a(f"v_add_f32_dpp v30, v30, v30 quad_perm:[1,0,3,2] {DPPF}"); a(f"v_add_f32_dpp v30, v30, v30 quad_perm:[2,3,0,1] {DPPF}")
    a("v_rcp_f32 v30, v30"); a("v_mul_f32 v28, v28, v30")
    def gcheck(name):
        a(f"L_{name}chk:")
        a("v_xor_b32 v37, s41, v37"); a("v_cmp_lt_u32 vcc, 1, v37"); a(f"s_cbranch_vccnz L_{name}retry")
        retry(name, [gload])
    gcheck("ga")
    a("v_lshlrev_b32 v36, 16, v36"); a("v_lshlrev_b32 v37, 13, v37"); a("v_xor_b32 v3, v3, v37")
    a("s_branch L_ochk")
    a("L_oloop:")
    a(oload)
    a("s_sub_u32 s77, s77, 1"); a("s_cbranch_scc1 L_exit")
    a("L_ochk:")
    a("s_waitcnt vmcnt(0)")
    if tailst: stamp(1)
    untag(16, 16, 4, 20)
    a("s_cbranch_vccnz L_oloop")
    stamp(8)
    yfload = "buffer_load_dwordx4 v[52:55], v39, s[20:23], 0 offen sc1"
    a(yfload)
    mul4(16, 28, 16)
    for qpm in ("[1,0,3,2]", "[2,3,0,1]"):
        for k in range(4): a(f"v_add_f32_dpp v{16+k}, v{16+k}, v{16+k} quad_perm:{qpm} {DPPF}")
    def cstage(src, waits):
        for k in range(4): a(f"v_cvt_pk_bf16_f32 v{48+k}, v{src+k}, v{src+k}")
        def cm(t):
            if waits: a(f"s_waitcnt vmcnt({7-t})")
            a(f"v_mfma_f32_16x16x32_bf16 {vr(32)}, {vr(64+4*t)}, {ar(64+4*t)}, {'0' if t == 0 else vr(32)}")
        for t in range(8):
            A = 64 + 4*t; hp = t >> 2; jj = t & 3
            for q in range(4):
                if (q >> 1) == hp: a(f"v_and_b32 v{A+q}, v{48+jj}, v{4+q}")
                else: a(f"v_and_b32_dpp v{A+q}, v{48+jj}, v{4+q} row_half_mirror {DPPF}")
            if t > 0 and not waits: cm(t-1)
        for t in (range(8) if waits else (7,)): cm(t)
    cstage(16, False)
    jitter()
    def yfcheck(A):
        for i in range(4): A(f"v_xor_b32 v{52+i}, s{24+i}, v{52+i}")
        A("v_or_b32 v56, v52, v53"); A("v_or3_b32 v56, v56, v54, v55"); A(f"v_and_b32 v56, {TAGM}, v56"); A("v_cmp_ne_u32 vcc, 0, v56")
    a("s_cmp_lg_u32 s34, 0")
    a(f"ds_write_b128 v47, {vr(32)} offset:4096")
    a("s_waitcnt lgkmcnt(0)"); a("s_barrier")
    a("s_cbranch_scc1 L_final")
    for p in range(1, 4): a(f"ds_read_b128 {vr(12+4*p)}, v47 offset:{4096+p*1024}")
    a("s_waitcnt vmcnt(0)")
    a("L_yfchk:")
    yfcheck(a)
    a("s_cbranch_vccnz L_yfretry")
    retry("yf", [yfload])
    a("s_waitcnt lgkmcnt(0)")
    if diag is not None:
        a(f"s_cmp_eq_u32 s2, {diag[0]}"); a("s_cbranch_scc0 L_dg1")
        if diag[1] == "end": a("s_memrealtime s[80:81]"); a("s_waitcnt lgkmcnt(0)")
        a("v_mov_b32 v60, s80"); a("v_mov_b32 v61, s36"); a("v_mov_b32 v62, 0x8000")
        a("global_store_dwordx2 v62, v[60:61], s[28:29] sc1")
        a("L_dg1:")
    add4(32, 32, 16); add4(20, 20, 24); add4(32, 32, 20); fma4(32, 36, 32, 52)
    settag(32)
    a(f"global_store_dwordx4 v3, {vr(32)}, s[28:29] sc1")
    a(END)
    a("L_notwo:")
    a("s_cmp_eq_u32 s64, 1"); a("s_cbranch_scc1 L_ffn")
    a("s_cmp_lt_u32 s15, 20"); a("s_cbranch_scc0 L_end")
    a("s_waitcnt vmcnt(0)")
    gcheck("gc")
    a("v_lshlrev_b32 v37, 13, v37")
    a("L_final:")
    a("s_cmp_lt_u32 s15, 20"); a("s_cbranch_scc0 L_end")
    if tailst: stamp(5)
    a("s_lshr_b32 s78, s32, 4")
    a("s_lshl_b32 s35, s15, 1"); a("s_cmp_ge_u32 s15, 10"); a("s_cselect_b32 s79, 19, 0"); a("s_sub_u32 s35, s35, s79")
    a("s_lshr_b32 s79, s32, 3"); a("s_mul_i32 s65, s79, 20"); a("s_add_u32 s65, s65, s35")
    a("s_mul_i32 s35, s78, 40"); a("s_sub_u32 s35, s65, s35"); a("s_lshr_b32 s67, s35, 3"); a("s_lshl_b32 s67, s67, 16"); a(f"s_add_u32 s67, s67, {YY + YP}")
    a("s_and_b32 s35, s35, 7"); a("s_lshl_b32 s35, s35, 6"); a("s_or_b32 s67, s67, s35"); a("s_lshl_b32 s35, s78, 9"); a("s_or_b32 s67, s67, s35")
    a("v_and_b32 v44, 3, v0"); a("v_lshrrev_b32 v45, 2, v0")
    a("v_and_b32 v48, 7, v45"); a("v_lshlrev_b32 v48, 10, v48"); a("v_lshl_add_u32 v48, v44, 4, v48")
    a("v_lshrrev_b32 v49, 3, v45"); a("v_lshl_add_u32 v48, v49, 14, v48")
    a("v_and_b32 v49, 14, v45"); a("v_lshl_add_u32 v48, v49, 6, v48")
    a("v_xor_b32 v48, s67, v48"); a("v_xor_b32 v48, v37, v48"); a("v_add_u32 v49, 0x8000, v48")
    a("v_lshl_add_u32 v44, v44, 3, v1"); a("v_lshlrev_b32 v44, 1, v44")
    a("s_and_b32 s66, s65, 3"); a("s_lshl_b32 s66, s66, 6"); a("s_and_b32 s35, s65, 4"); a("s_lshl_b32 s35, s35, 1"); a("s_add_u32 s66, s66, s35")
    a("s_lshr_b32 s35, s65, 3"); a("s_lshl_b32 s35, s35, 8"); a("s_add_u32 s66, s66, s35")
    a("buffer_load_ushort v45, v44, s[56:59], s66 offen")
    if tailst: stamp(3)
    def sweep2(k):
        for t in (0, 1): a(f"global_load_dwordx4 {vr(64+8*k+4*t)}, v{48+t}, s[28:29] sc1")
    for k in range(FP2-1): sweep2(k)
    a("L_yloop2:")
    for k in range(FP2):
        sweep2((k+FP2-1) % FP2)
        if k == 0: a("s_sub_u32 s77, s77, 1"); a("s_cbranch_scc1 L_exit")
        a(f"s_waitcnt vmcnt({(FP2-1)*2})")
        untag(16, 64+8*k, 8, 32)
        a("s_and_b64 exec, exec, vcc")
        a("s_cbranch_scc1 L_yloop2" if k == FP2-1 else "s_cbranch_scc0 L_ydone")
    a("L_ydone:")
    a("s_mov_b64 exec, -1")
    if tailst: stamp(2)
    add4(16, 16, 20)
    a("v_permlane32_swap_b32 v16, v18"); a("v_permlane32_swap_b32 v17, v19")
    if pk: a("v_pk_add_f32 v[16:17], v[16:17], v[18:19]")
    else: a("v_add_f32 v16, v16, v18"); a("v_add_f32 v17, v17, v19")
    a("v_permlane16_swap_b32 v16, v17")
    a("v_add_f32 v16, v16, v17")
    a("s_cmp_lg_u32 s65, 0")
    for m in ("row_ror:8", "row_ror:4"): a(f"v_add_f32_dpp v16, v16, v16 {m} {DPPF}")
    a("s_mov_b64 exec, s[68:69]")
    a("v_cvt_pk_bf16_f32 v16, v16, v16")
    a("buffer_store_short v16, v44, s[56:59], s66 offen")
    if stamps: a("s_mov_b32 s64, 3")
    a("s_cbranch_scc0 L_epoch")
    a("L_end:")
    if stamps:
        a("s_cmp_eq_u32 s14, 0"); a("s_cselect_b32 s14, s100, 0")
        stamp(9)
        a("s_mov_b64 exec, 1")
        a("s_lshl_b32 s3, s2, 2"); a("s_add_u32 s3, s3, s34"); a("s_lshl_b32 s3, s3, 6"); a("s_add_u32 s3, s3, 0x10000000")
        a("v_mov_b32 v3, s3")
        a("s_getreg_b32 s35, hwreg(HW_REG_XCC_ID)")
        a("s_waitcnt lgkmcnt(0)")
        a("s_getreg_b32 s78, hwreg(HW_REG_HW_ID)")
        vals = [f"s{80+2*k}" for k in range(10)] + ["s35", "s64", "s78", "s77", "s31", "s14"]
        for q in range(4):
            for k in range(4): a(f"v_mov_b32 v{48+4*q+k}, {vals[4*q+k]}")
            a(f"global_store_dwordx4 v3, {vr(48+4*q)}, s[28:29] offset:{16*q}")
    a("L_exit:")
    a("s_endpgm")
    a("L_epoch:")
    a("s_mov_b64 exec, 1")
    for k in range(4): a(f"v_mov_b32 v{28+k}, s{36+k}")
    a("v_mov_b32 v24, 0")
    a("global_store_dwordx4 v24, v[28:31], s[28:29]")
    if diag is not None:
        a("s_memrealtime s[82:83]")
        a("v_mov_b32 v62, 0x8000")
        a("L_dg2:"); a("global_load_dwordx2 v[60:61], v62, s[28:29] sc1"); a("s_sub_u32 s77, s77, 1"); a("s_cbranch_scc1 L_exit")
        a("s_waitcnt vmcnt(0) lgkmcnt(0)"); a("v_cmp_ne_u32 vcc, s36, v61"); a("s_cbranch_vccnz L_dg2")
        a("v_readfirstlane_b32 s35, v60")
        if diag[1] == "own": a("s_mov_b32 s35, s82")
        a("s_sub_u32 s35, s35, s80"); a(f"s_mul_i32 s35, s35, {diag[2]}"); a("s_add_u32 s35, s35, 6000"); a("s_min_u32 s35, s35, 30000")
        a("L_dg3:"); a("s_memrealtime s[78:79]"); a("s_waitcnt lgkmcnt(0)"); a("s_sub_u32 s78, s78, s80"); a("s_cmp_lt_u32 s78, s35"); a("s_cbranch_scc1 L_dg3")
    a(END)
    a("L_ffn:")
    a.wait("ml")
    a("L_hchk:")
    untag(28, 28, 4, 20)
    a("s_cbranch_vccnz L_hretry")
    retry("h", [mlload])
    gcheck("gf")
    a("v_and_b32 v36, 0xffff0000, v36")
    cstage(28, True)
    jitter()
    if tailst: stamp(3)
    a("s_bitcmp1_b32 s34, 0")
    a(f"ds_write_b128 v47, {vr(32)} offset:4096")
    a("s_waitcnt lgkmcnt(0)"); a("s_barrier")
    a("s_cbranch_scc1 L_end")
    a(f"ds_read_b128 {vr(20)}, v47 offset:{4096+1024}")
    a("s_waitcnt lgkmcnt(0)")
    add4(32, 32, 20); mul4(32, 36, 32)
    settag(32)
    pub("ypub", f"global_store_dwordx4 v39, {vr(32)}, s[28:29]", "ffn")
    a(END)
    for lab in ("L_noh", "L_ng1", "L_ng2", "L_nogp", "L_noha") + (("L_nopl",) if RACE else ()):
        end = a.L.index(lab + ":")
        b = [i for i, l in enumerate(a.L) if l.startswith("s_cbranch_scc") and l.endswith(" " + lab)][0]
        body = a.L[b+1:end]
        inv = "s_cbranch_scc1" if a.L[b].startswith("s_cbranch_scc0") else "s_cbranch_scc0"
        a.L[b:end] = [f"{inv} {lab}_do"]
        slow[:0] = [f"{lab}_do:"] + body + [f"s_branch {lab}"]
    for l in slow: a(l)
    body, nn = fix_hazards(a.L)
    out = [HEADER.rstrip("\n"), f"; @launch grid=(256,1,1) block=(256,1,1) lds={LDS}",
           '.amdgcn_target "amdgcn-amd-amdhsa--gfx950"', ".text", f".globl {KN}", ".p2align 12"]
    if pad: out.append(f".fill {pad//4}, 4, 0xbf800000")
    out += [".p2align 8", f".type {KN},@function"]
    out += [l if l.endswith(":") else "    " + l for l in body]
    out += ["L_last:", "    s_endpgm",
            '.section .rodata,"a"', ".p2align 6", f".amdhsa_kernel {KN}",
            "  .amdhsa_next_free_vgpr 256", "  .amdhsa_next_free_sgpr 102", "  .amdhsa_accum_offset 128",
            "  .amdhsa_group_segment_fixed_size 0", "  .amdhsa_kernarg_size 104", "  .amdhsa_user_sgpr_count 2",
            "  .amdhsa_user_sgpr_kernarg_segment_ptr 1", "  .amdhsa_system_sgpr_workgroup_id_x 1", ".end_amdhsa_kernel"]
    return "\n".join(out) + "\n", nn
if __name__ == "__main__":
    s, nn = gen()
    open("g14.s", "w").write(s)
    print("nops inserted", nn)
```
